```python
import torch

def _softmax(x, axis=-1):
    return torch.softmax(x, dim=axis)
def _gelu(x):
    return torch.nn.functional.gelu(x, approximate="tanh")
def _silu(x):
    return torch.nn.functional.silu(x)
def _sigmoid(x):
    return torch.sigmoid(x)
def _layernorm(x, axis=-1, eps=1e-5):
    m = x.mean(dim=axis, keepdim=True)
    v = x.var(dim=axis, keepdim=True, unbiased=False)
    return (x - m) / torch.sqrt(v + eps)
def _scatter_add(tgt, idx, src, axis=0):
    return tgt.clone().index_add_(axis, idx, src)
def _segment_sum(src, seg, n):
    out = torch.zeros((n,) + src.shape[1:], dtype=src.dtype)
    return out.index_add_(0, seg, src)
def _pad(x, pw):
    flat = tuple(v for pair in reversed(pw) for v in pair)
    return torch.nn.functional.pad(x, flat)

kernel_name = 'gated_mix__linear_kernel_hedgehog__ssm_conv_s4__prompt'

def setup_inputs():

    _w = (lambda a: (lambda t: t.to(torch.bfloat16) if t.is_floating_point() else t)(torch.as_tensor(a)))
    def _A_setup():
        B, S, D, H = 1, 2048, 448, 16
        Dh = D // H
        return {
            "x": _w((lambda *s: torch.randn(*s, dtype=torch.bfloat16) * 0.05)(B, S, D)),
            "wqkv": _w((lambda *s: torch.randn(*s, dtype=torch.bfloat16) * 0.8)(D, 3 * D)),
            "w_phi": _w((lambda *s: torch.randn(*s, dtype=torch.bfloat16) * 0.8)(H, Dh, Dh) * (Dh ** -0.5)),
            "wo": _w((lambda *s: torch.randn(*s, dtype=torch.bfloat16) * 0.05)(D, D)),
        }
    _A_in = _A_setup()

    def _B_setup():
        B, L, D, N = 1, 2048, 448, 256
        A_re = -(lambda _x: torch.exp(torch.as_tensor(_x)))((lambda *s: torch.randn(*s, dtype=torch.bfloat16) * 6.4)(D, N))
        A_im = torch.pi * (lambda *s: torch.randn(*s, dtype=torch.bfloat16) * 0.05)(D, N)
        B_re = (lambda *s: torch.randn(*s, dtype=torch.bfloat16) * 0.1)(D, N)
        B_im = (lambda *s: torch.randn(*s, dtype=torch.bfloat16) * 0.1)(D, N)
        C_re = (lambda *s: torch.randn(*s, dtype=torch.bfloat16) * 0.1)(D, N)
        C_im = (lambda *s: torch.randn(*s, dtype=torch.bfloat16) * 0.1)(D, N)
        log_dt = (lambda *s: torch.randn(*s, dtype=torch.bfloat16) * 0.05)(D) * 0.5 - 4.0
        Dskip = (lambda *s: torch.randn(*s, dtype=torch.bfloat16) * 0.05)(D)
        return {
            "u": _w((lambda *s: torch.randn(*s, dtype=torch.bfloat16) * 0.05)(B, L, D)),
            "A_re": _w(A_re),
            "A_im": _w(A_im),
            "B_re": _w(B_re),
            "B_im": _w(B_im),
            "C_re": _w(C_re),
            "C_im": _w(C_im),
            "log_dt": _w(log_dt),
            "Dskip": _w(Dskip),
        }
    _B_in = _B_setup()

    return {
        "A_x": _A_in["x"],
        "A_wqkv": _A_in["wqkv"],
        "A_w_phi": _A_in["w_phi"],
        "A_wo": _A_in["wo"],
        "B_u": _B_in["u"],
        "B_A_re": _B_in["A_re"],
        "B_A_im": _B_in["A_im"],
        "B_B_re": _B_in["B_re"],
        "B_B_im": _B_in["B_im"],
        "B_C_re": _B_in["C_re"],
        "B_C_im": _B_in["C_im"],
        "B_log_dt": _B_in["log_dt"],
        "B_Dskip": _B_in["Dskip"],
        "gate_w": _w((lambda *s: torch.randn(*s, dtype=torch.bfloat16) * 0.05)(448) * 16.0),
    }

def reference(A_x, A_wqkv, A_w_phi, A_wo, B_u, B_A_re, B_A_im, B_B_re, B_B_im, B_C_re, B_C_im, B_log_dt, B_Dskip, gate_w):
    def _A_ref(x, wqkv, w_phi, wo):
        B, S, D = x.shape
        H = 16; Dh = D // H
        qkv = (lambda x, *d: x.permute(*d))((x @ wqkv).reshape(B, S, 3, H, Dh), 2, 0, 3, 1, 4)
        q, k, v = qkv[0], qkv[1], qkv[2]
        pq = torch.einsum("bhsd,hdf->bhsf", q, w_phi)
        pk = torch.einsum("bhsd,hdf->bhsf", k, w_phi)
        phi_q = torch.concatenate([_softmax(pq, axis=-1), _softmax(-pq, axis=-1)], axis=-1)
        phi_k = torch.concatenate([_softmax(pk, axis=-1), _softmax(-pk, axis=-1)], axis=-1)
        kv = torch.einsum("bhsf,bhsd->bhfd", phi_k, v)
        z  = torch.einsum("bhsf->bhf", phi_k)
        num = torch.einsum("bhqf,bhfd->bhqd", phi_q, kv)
        den = torch.einsum("bhqf,bhf->bhq", phi_q, z)[..., None] + 1e-6
        o = num / den
        return (lambda x, *d: x.permute(*d))(o, 0, 2, 1, 3).reshape(B, S, D) @ wo

    def _B_ref(u, A_re, A_im, B_re, B_im, C_re, C_im, log_dt, Dskip):
        Bsz, L, D = u.shape
        dt = torch.exp(log_dt)[:, None]
        A = A_re + 1j * A_im
        Bc = B_re + 1j * B_im
        Cc = C_re + 1j * C_im
        logdA = dt * A
        dB = dt * Bc
        l = (lambda x, dt: x.to(dt))(torch.arange(L), A_re.dtype)
        P = torch.exp(logdA[:, :, None] * l[None, None, :])
        K = torch.einsum("dn,dnl,dn->dl", Cc, P, dB).real
        L2 = 2 * L
        Kp = _pad(K, ((0, 0), (0, L)))
        up = (lambda x, *d: x.permute(*d))(u, 0, 2, 1)
        up = _pad(up, ((0, 0), (0, 0), (0, L)))
        Kf = (lambda x, axes=(-2,-1): torch.fft.rfft2(x.float(), dim=axes))(Kp[:, None, :], axes=(-2, -1))
        Uf = (lambda x, axes=(-2,-1): torch.fft.rfft2(x.float(), dim=axes))(up[:, :, None, :], axes=(-2, -1))
        Yf = Uf * Kf[None, :, :, :]
        y = (lambda x, s, axes=(-2,-1): torch.fft.irfft2(x, s=s, dim=axes).to(torch.bfloat16))(Yf, (1, L2), axes=(-2, -1))[:, :, 0, :L]
        y = (lambda x, *d: x.permute(*d))(y, 0, 2, 1) + u * Dskip[None, None, :]
        return y

    x = A_x
    g = _sigmoid((x * gate_w).sum(-1, keepdims=True))
    a = _A_ref(x, A_wqkv, A_w_phi, A_wo)
    b = _B_ref(x, B_A_re, B_A_im, B_B_re, B_B_im, B_C_re, B_C_im, B_log_dt, B_Dskip)
    return g * a + (1 - g) * b
```

```python
import re

REG_RE = re.compile(r'^(-?)(?:abs\()?([vsa])(\d+)\)?$')
RNG_RE = re.compile(r'^(-?)([vsa])\[(\d+):(\d+)\]$')

def regs_of(tok):
    tok = tok.strip()
    m = REG_RE.match(tok)
    if m: return {(m.group(2), int(m.group(3)))}
    m = RNG_RE.match(tok)
    if m: return {(m.group(2), i) for i in range(int(m.group(3)), int(m.group(4)) + 1)}
    if tok == 'vcc': return {('s', 106), ('s', 107)}
    if tok == 'exec': return {('s', 126), ('s', 127)}
    if tok == 'm0': return {('s', 124)}
    return set()

TRANS = ('v_exp_f32', 'v_log_f32', 'v_rcp_f32', 'v_rsq_f32', 'v_sqrt_f32', 'v_sin_f32', 'v_cos_f32')

class Ins:
    __slots__ = ('text', 'mn', 'ops', 'rd', 'wr', 'kind', 'passes', 'slots', 'srcc', 'ab', 'data')
    def __init__(self, text):
        self.text = text
        t = text.split(';')[0].strip()
        parts = t.split(None, 1)
        self.mn = parts[0]
        rest = parts[1] if len(parts) > 1 else ''
        ops = []; cur = ''; depth = 0
        for ch in rest:
            if ch in '[(': depth += 1
            if ch in '])': depth -= 1
            if ch == ',' and depth == 0: ops.append(cur.strip()); cur = ''
            else: cur += ch
        if cur.strip(): ops.append(cur.strip())
        clean = []
        for o in ops:
            clean.append(o.split()[0] if o.split() else o)
        self.ops = clean
        self.rd = set(); self.wr = set(); self.kind = 'other'; self.passes = 0; self.slots = 1
        self.srcc = set(); self.ab = set(); self.data = set()
        mn = self.mn
        R = lambda i: regs_of(clean[i]) if i < len(clean) else set()
        if mn == 's_nop':
            self.kind = 'nop'; self.slots = int(clean[0], 0) + 1
        elif mn.startswith('v_mfma'):
            self.kind = 'mfma'
            self.passes = 8 if '32x32' in mn else 4
            self.wr = R(0); self.ab = R(1) | R(2); self.srcc = R(3); self.rd = self.ab | self.srcc
        elif mn.startswith('v_cmp'):
            self.kind = 'valu'; self.wr = R(0); self.rd = R(1) | R(2)
        elif mn in ('v_readfirstlane_b32', 'v_readlane_b32'):
            self.kind = 'valu'; self.wr = R(0); self.rd = R(1) | R(2)
        elif mn.startswith('v_permlane'):
            self.kind = 'valu'; self.wr = R(0) | R(1); self.rd = R(0) | R(1)
        elif mn.startswith('v_'):
            self.kind = 'valu'
            self.wr = R(0)
            for i in range(1, len(clean)): self.rd |= R(i)
            if mn.startswith('v_fmac') or mn.startswith('v_pk_fmac'): self.rd |= R(0)
            if mn.startswith('v_cndmask') and len(clean) == 3: self.rd |= regs_of('vcc')
            if mn.startswith(('v_add_co', 'v_addc_co', 'v_sub_co')): self.wr |= R(1)
        elif mn.startswith('ds_read') or mn.startswith('ds_bpermute') or mn.startswith('ds_swizzle'):
            self.kind = 'ds'; self.wr = R(0)
            for i in range(1, len(clean)): self.rd |= R(i)
        elif mn.startswith('ds_'):
            self.kind = 'ds'
            for i in range(len(clean)): self.rd |= R(i)
        elif mn.startswith(('buffer_load', 'global_load')):
            self.kind = 'vmem'
            if ' lds' in (' ' + t + ' ').replace(',', ' ') and re.search(r'\blds\b', t):
                for i in range(len(clean)): self.rd |= R(i)
                self.rd |= regs_of('m0'); self.kind = 'vmem_lds'
            else:
                self.wr = R(0)
                for i in range(1, len(clean)): self.rd |= R(i)
        elif mn.startswith(('buffer_store', 'global_store', 'buffer_atomic', 'global_atomic')):
            self.kind = 'vmem'
            for i in range(len(clean)): self.rd |= R(i)
            if 'x4' in mn or 'x3' in mn:
                self.data = R(0) if mn.startswith('buffer') else R(1)
        elif mn.startswith('s_'):
            self.kind = 'salu'
            if mn.startswith(('s_cmp', 's_cbranch', 's_branch', 's_waitcnt', 's_barrier', 's_endpgm', 's_sleep', 's_setprio')):
                for i in range(len(clean)): self.rd |= R(i)
            else:
                self.wr = R(0)
                for i in range(1, len(clean)): self.rd |= R(i)

def isv(s): return {r for r in s if r[0] in 'va'}
def iss(s): return {r for r in s if r[0] == 's'}

def need(prev, cur):
    n = 0
    pk, ck = prev.kind, cur.kind
    if pk == 'valu':
        wv = isv(prev.wr); wsg = iss(prev.wr)
        if ck == 'mfma' and wv & cur.rd: n = max(n, 2)
        if prev.mn.startswith(TRANS) and ck in ('valu', 'mfma', 'ds', 'vmem') and not cur.mn.startswith(TRANS) and wv & cur.rd: n = max(n, 1)
        if prev.mn.startswith(TRANS) and cur.mn.startswith(TRANS) and wv & cur.rd: n = max(n, 1)
        if cur.mn.startswith('v_permlane') and wv & cur.rd: n = max(n, 2)
        if cur.mn in ('v_readfirstlane_b32', 'v_readlane_b32') and wv & cur.rd: n = max(n, 1)
        if 'dpp' in cur.text and ck == 'valu' and wv & cur.rd: n = max(n, 2)
        if wsg:
            if ck == 'valu' and wsg & cur.rd: n = max(n, 2)
            if ck in ('vmem', 'vmem_lds') and wsg & cur.rd: n = max(n, 5)
            if ck == 'salu' and wsg & cur.rd: n = max(n, 1)
            if cur.mn in ('v_readlane_b32','v_writelane_b32') and wsg & cur.rd: n = max(n, 4)
    if pk == 'mfma':
        P = prev.passes
        full = {4: 8, 8: 12}[P]
        part = {4: 6, 8: 10}[P]
        if ck == 'mfma':
            if prev.wr & cur.ab: n = max(n, full)
            if prev.wr & cur.srcc:
                if not (cur.srcc == prev.wr and cur.passes == P): n = max(n, part)
            if (prev.wr & cur.wr) and not (cur.srcc == prev.wr): n = max(n, full)
        elif ck in ('valu', 'ds', 'vmem', 'vmem_lds'):
            if prev.wr & (cur.rd | cur.wr): n = max(n, full)
            if ck == 'valu' and prev.srcc & cur.wr: n = max(n, {4: 3, 8: 7}[P])
            if ck in ('ds','vmem') and (prev.srcc | prev.ab) & cur.wr: n = max(n, 0)
    if pk == 'vmem' and prev.data and ck == 'valu' and prev.data & cur.wr: n = max(n, 2)
    if pk == 'vmem' and prev.data and ck != 'valu' and prev.data & cur.wr: n = max(n, 1)
    if pk == 'salu' and ('s', 124) in prev.wr and ck == 'vmem_lds': n = max(n, 1)
    if pk == 'salu' and iss(prev.wr) & {('s',126),('s',127)} and False: pass
    return n

class Asm:
    def __init__(self):
        self.lines = []
    def __call__(self, text):
        for ln in text.split('\n'):
            s = ln.strip()
            if not s: continue
            if s.startswith(';') or s.startswith('.') or s.endswith(':'):
                self.lines.append(s)
            else:
                self.lines.append(Ins(s))
    def label(self, name): self.lines.append(name + ':')
    def comment(self, c): self.lines.append('; ' + c)
    def finalize(self):
        out = []
        hist = []
        for x in self.lines:
            if isinstance(x, str):
                out.append(x if (x.endswith(':') or x.startswith('.')) else '  ' + x)
                continue
            req = 0
            dist = 0
            for p in reversed(hist):
                if dist >= 20: break
                nn = need(p, x)
                if nn > dist: req = max(req, nn - dist)
                dist += p.slots
            while req > 0:
                k = min(req, 16)
                nop = Ins(f's_nop {k-1}')
                out.append('  ' + nop.text); hist.append(nop); req -= k
            out.append('  ' + x.text); hist.append(x)
            if len(hist) > 64: hist = hist[-40:]
        return '\n'.join(out) + '\n'
```

```python
from roleB import YT_OFF, O_OFF, G_OFF, WS_SIZE
WO_L = 0
Y_L = 57344

def k2(A):
    A("""
  s_cmp_ge_u32 s2, 224
  s_cbranch_scc1 LK2_exit
  s_load_dwordx2 s[36:37], s[0:1], 0
  s_load_dwordx2 s[38:39], s[0:1], 24
  s_load_dwordx2 s[40:41], s[0:1], 96
  s_load_dwordx4 s[32:35], s[0:1], 112
  s_load_dwordx2 s[24:25], s[0:1], 128
  v_and_b32 v1, 63, v0
  v_lshrrev_b32 v2, 6, v0
  s_and_b32 s3, s2, 7
  s_lshr_b32 s4, s2, 3
  v_readfirstlane_b32 s6, v2
  s_lshl_b32 s5, s3, 2
  s_and_b32 s42, s4, 3
  s_add_u32 s5, s5, s42
  s_lshr_b32 s7, s4, 2
  """)
    A("""
  s_and_b32 s43, s6, 1
  s_lshr_b32 s44, s6, 1
  v_and_b32 v3, 31, v1
  v_lshrrev_b32 v4, 5, v1
  s_lshl_b32 s45, s5, 6
  s_lshl_b32 s46, s43, 5
  s_add_u32 s45, s45, s46
  v_add_u32 v5, s45, v3
  v_mul_u32_u24 v6, 896, v5
  v_lshl_add_u32 v7, v4, 4, v6
  """)
    A("""
  v_lshrrev_b32 v8, 3, v1
  v_and_b32 v9, 7, v1
  v_bfe_u32 v10, v8, 1, 1
  v_lshlrev_b32 v10, 2, v10
  v_xor_b32 v10, v10, v9
  v_mul_u32_u24 v11, 896, v8
  v_lshl_add_u32 v11, v10, 4, v11
  s_lshl_b32 s46, s7, 7
  s_mul_i32 s47, s6, 7168
  s_add_u32 s46, s46, s47
  v_add_u32 v11, s46, v11
  v_lshlrev_b32 v12, 12, v8
  v_lshl_add_u32 v12, v10, 4, v12
  s_lshl_b32 s48, s6, 10
  s_waitcnt lgkmcnt(0)
  s_mov_b32 s8, s36
  s_mov_b32 s9, s37
  s_mov_b32 s10, 1835008
  s_mov_b32 s11, 0x00020000
  s_mov_b32 s12, s24
  s_mov_b32 s13, s25
  s_mov_b32 s14, %d
  s_mov_b32 s15, 0x00020000
  s_mov_b32 s16, s38
  s_mov_b32 s17, s39
  s_mov_b32 s18, 401408
  s_mov_b32 s19, 0x00020000
  s_mov_b32 s20, s32
  s_mov_b32 s21, s33
  s_mov_b32 s22, 1835008
  s_mov_b32 s23, 0x00020000
  """ % WS_SIZE)
    OF = 16
    s_mov = []
    for C in range(7):
        for ks in range(4 * C, 4 * C + 4):
            A(f"buffer_load_dwordx4 v[{OF+4*ks}:{OF+4*ks+3}], v7, s[12:15], s49 offen offset:{32*ks}" if False else
              f"buffer_load_dwordx4 v[{OF+4*ks}:{OF+4*ks+3}], v7, s[12:15], s50 offen offset:{32*ks}") if False else None
    A(f"s_mov_b32 s50, {O_OFF}")
    for C in range(7):
        for ks in range(4 * C, 4 * C + 4):
            A(f"buffer_load_dwordx4 v[{OF+4*ks}:{OF+4*ks+3}], v7, s[12:15], s50 offen offset:{32*ks}")
        for hf in range(2):
            j0 = 8 * C + 4 * hf
            A(f"s_add_u32 m0, s48, {WO_L + 1024*j0}")
            A(f"s_mov_b32 s49, {j0 * 7168}")
            A("buffer_load_dwordx4 v11, s[16:19], s49 offen lds")
    A(f"""
  s_lshl_b32 s49, s7, 18
  s_lshl_b32 s51, s5, 7
  s_add_u32 s49, s49, s51
  s_lshl_b32 s51, s6, 15
  s_add_u32 s49, s49, s51
  s_add_u32 s49, s49, {YT_OFF}
  s_add_u32 m0, s48, {Y_L}
  s_add_u32 s51, s49, 131072
  buffer_load_dwordx4 v12, s[12:15], s49 offen lds
  s_add_u32 m0, s48, {Y_L + 4096}
  s_nop 0
  buffer_load_dwordx4 v12, s[12:15], s51 offen lds
  """)
    XR, DS, GG = 88+40, 0, 0
    ACC, XV, DV, GV, YV = 128, 144, 152, 160, 162
    A(f"""
  s_lshl_b32 s49, s7, 7
  s_lshl_b32 s51, s44, 6
  s_add_u32 s49, s49, s51
  v_lshl_add_u32 v13, v4, 3, v6
  v_lshlrev_b32 v14, 3, v4
  v_add_u32 v14, s49, v14
  v_lshlrev_b32 v15, 2, v5
  s_mov_b32 s51, {G_OFF}
  """)
    for q in range(4):
        A(f"buffer_load_dwordx2 v[{XV+2*q}:{XV+2*q+1}], v13, s[8:11], s49 offen offset:{16*q}")
    for q in range(4):
        A(f"global_load_dwordx2 v[{DV+2*q}:{DV+2*q+1}], v14, s[40:41] offset:{16*q}")
    A(f"buffer_load_dword v{GV}, v15, s[12:15], s51 offen")
    NLATE = 2 + 4 + 4 + 1
    A(f"""
  v_and_b32 v2, 15, v1
  v_lshrrev_b32 v8, 4, v1
  v_lshrrev_b32 v9, 1, v8
  v_lshlrev_b32 v9, 3, v9
  v_lshrrev_b32 v10, 2, v2
  v_add_u32 v9, v9, v10
  v_lshlrev_b32 v9, 7, v9
  v_and_b32 v8, 1, v8
  v_lshl_add_u32 v9, v8, 5, v9
  v_and_b32 v10, 3, v2
  v_lshl_add_u32 v9, v10, 3, v9
  v_bfe_u32 v10, v2, 3, 1
  v_xor_b32 v10, s44, v10
  v_lshl_add_u32 v9, v10, 6, v9
  """)
    A(f"""
  v_lshrrev_b32 v8, 4, v1
  v_lshrrev_b32 v10, 1, v8
  v_lshlrev_b32 v10, 2, v10
  v_lshrrev_b32 v12, 2, v2
  v_add_u32 v10, v10, v12
  s_lshl_b32 s51, s44, 5
  v_add_u32 v10, s51, v10
  v_lshlrev_b32 v10, 7, v10
  v_and_b32 v8, 1, v8
  v_lshl_add_u32 v10, v8, 5, v10
  v_and_b32 v12, 3, v2
  v_lshl_add_u32 v10, v12, 3, v10
  v_bfe_u32 v12, v2, 3, 1
  v_xor_b32 v12, s43, v12
  v_lshl_add_u32 v10, v12, 6, v10
  """)
    for i in range(16): A(f"v_mov_b32 v{ACC+i}, 0")
    FR = 176
    def trreads(C):
        b = FR + 16 * (C & 1)
        for kk in range(4):
            ks = 4 * C + kk
            A(f"ds_read_b64_tr_b16 v[{b+4*kk}:{b+4*kk+1}], v9 offset:{WO_L + 2048*ks}")
            A(f"ds_read_b64_tr_b16 v[{b+4*kk+2}:{b+4*kk+3}], v9 offset:{WO_L + 2048*ks + 512}")
    vm = lambda C: 6 * (6 - C) + NLATE
    A(f"s_waitcnt vmcnt({vm(0)})")
    A("s_barrier")
    trreads(0)
    for C in range(7):
        A("s_waitcnt lgkmcnt(0)")
        if C < 6:
            A(f"s_waitcnt vmcnt({vm(C+1)})")
            A("s_barrier")
            trreads(C + 1)
        b = FR + 16 * (C & 1)
        for kk in range(4):
            ks = 4 * C + kk
            A(f"v_mfma_f32_32x32x16_bf16 v[{ACC}:{ACC+15}], v[{b+4*kk}:{b+4*kk+3}], v[{OF+4*ks}:{OF+4*ks+3}], v[{ACC}:{ACC+15}]")
    A("s_waitcnt vmcnt(0)")
    A("s_barrier")
    for q in range(4):
        A(f"ds_read_b64_tr_b16 v[{YV+2*q}:{YV+2*q+1}], v10 offset:{Y_L + 1024*q}")
    T = 16
    A(f"v_sub_f32 v{GV+1}, 1.0, v{GV}")
    A(f"v_cvt_pk_bf16_f32 v{GV+1}, v{GV+1}, v{GV+1}")
    A(f"v_lshlrev_b32 v{GV+1}, 16, v{GV+1}")
    A("s_waitcnt lgkmcnt(0)")
    for q in range(4):
        a = ACC + 4 * q
        t = T + 16 * q
        A(f"v_cvt_pk_bf16_f32 v{t}, v{a}, v{a+1}")
        A(f"v_cvt_pk_bf16_f32 v{t+1}, v{a+2}, v{a+3}")
        for h2 in range(2):
            A(f"v_lshlrev_b32 v{a+2*h2}, 16, v{t+h2}")
            A(f"v_and_b32 v{a+2*h2+1}, 0xffff0000, v{t+h2}")
        for (src, dst) in ((XV + 2 * q, t + 2), (DV + 2 * q, t + 6), (YV + 2 * q, t + 10)):
            for h2 in range(2):
                A(f"v_lshlrev_b32 v{dst+2*h2}, 16, v{src+h2}")
                A(f"v_and_b32 v{dst+2*h2+1}, 0xffff0000, v{src+h2}")
        for h2 in range(2):
            A(f"v_pk_mul_f32 v[{t+2+2*h2}:{t+3+2*h2}], v[{t+2+2*h2}:{t+3+2*h2}], v[{t+6+2*h2}:{t+7+2*h2}]")
        for h2 in range(2):
            A(f"v_cvt_pk_bf16_f32 v{t+6+h2}, v{t+2+2*h2}, v{t+3+2*h2}")
        for h2 in range(2):
            A(f"v_lshlrev_b32 v{t+2+2*h2}, 16, v{t+6+h2}")
            A(f"v_and_b32 v{t+3+2*h2}, 0xffff0000, v{t+6+h2}")
        for h2 in range(2):
            A(f"v_pk_add_f32 v[{t+2+2*h2}:{t+3+2*h2}], v[{t+2+2*h2}:{t+3+2*h2}], v[{t+10+2*h2}:{t+11+2*h2}]")
        for h2 in range(2):
            A(f"v_cvt_pk_bf16_f32 v{t+6+h2}, v{t+2+2*h2}, v{t+3+2*h2}")
        for h2 in range(2):
            A(f"v_lshlrev_b32 v{t+2+2*h2}, 16, v{t+6+h2}")
            A(f"v_and_b32 v{t+3+2*h2}, 0xffff0000, v{t+6+h2}")
        for h2 in range(2):
            A(f"v_pk_mul_f32 v[{a+2*h2}:{a+2*h2+1}], v[{a+2*h2}:{a+2*h2+1}], v[{GV}:{GV+1}] op_sel:[0,0] op_sel_hi:[1,0]")
            A(f"v_pk_mul_f32 v[{t+2+2*h2}:{t+3+2*h2}], v[{t+2+2*h2}:{t+3+2*h2}], v[{GV}:{GV+1}] op_sel:[0,1] op_sel_hi:[1,1]")
        for h2 in range(2):
            A(f"v_cvt_pk_bf16_f32 v{t+6+h2}, v{a+2*h2}, v{a+2*h2+1}")
            A(f"v_cvt_pk_bf16_f32 v{t+8+h2}, v{t+2+2*h2}, v{t+3+2*h2}")
        for h2 in range(2):
            A(f"v_lshlrev_b32 v{a+2*h2}, 16, v{t+6+h2}")
            A(f"v_and_b32 v{a+2*h2+1}, 0xffff0000, v{t+6+h2}")
            A(f"v_lshlrev_b32 v{t+2+2*h2}, 16, v{t+8+h2}")
            A(f"v_and_b32 v{t+3+2*h2}, 0xffff0000, v{t+8+h2}")
        for h2 in range(2):
            A(f"v_pk_add_f32 v[{a+2*h2}:{a+2*h2+1}], v[{a+2*h2}:{a+2*h2+1}], v[{t+2+2*h2}:{t+3+2*h2}]")
        A(f"v_cvt_pk_bf16_f32 v{96+2*q}, v{a}, v{a+1}")
        A(f"v_cvt_pk_bf16_f32 v{97+2*q}, v{a+2}, v{a+3}")
    A("""
  v_permlane32_swap_b32 v96, v98
  v_permlane32_swap_b32 v97, v99
  v_permlane32_swap_b32 v100, v102
  v_permlane32_swap_b32 v101, v103
  v_lshl_add_u32 v13, v4, 4, v6
  s_nop 1
  buffer_store_dwordx4 v[96:99], v13, s[20:23], s49 offen
  buffer_store_dwordx4 v[100:103], v13, s[20:23], s49 offen offset:32
LK2_exit:
  s_endpgm
  """)
```

```python
from roleB import LOG2E, KVP_OFF, O_OFF, G_OFF, WS_SIZE
R0 = 0
R1 = 28672
KVF = 61440

X = 128
FR = 64
ACK = 32
ACV = 48
PHI = 240
IDF = 248

def softmax_feats(A, acc, out_p, out_m, tmp):
    p = acc
    e = tmp
    f = tmp + 16
    t = tmp + 32
    for j in range(8): A(f"v_cvt_pk_bf16_f32 v{e+j}, v{acc+2*j}, v{acc+2*j+1}")
    for j in range(8):
        A(f"v_lshlrev_b32 v{p+2*j}, 16, v{e+j}")
        A(f"v_and_b32 v{p+2*j+1}, 0xffff0000, v{e+j}")
    mx, mn, t2, t3 = t, t + 1, t + 2, t + 3
    A(f"v_max3_f32 v{mx}, v{p}, v{p+1}, v{p+2}")
    A(f"v_min3_f32 v{mn}, v{p}, v{p+1}, v{p+2}")
    A(f"v_max3_f32 v{t2}, v{p+3}, v{p+4}, v{p+5}")
    A(f"v_min3_f32 v{t3}, v{p+3}, v{p+4}, v{p+5}")
    for k in (6, 10):
        A(f"v_max3_f32 v{mx}, v{mx}, v{p+k}, v{p+k+1}")
        A(f"v_min3_f32 v{mn}, v{mn}, v{p+k}, v{p+k+1}")
        A(f"v_max3_f32 v{t2}, v{t2}, v{p+k+2}, v{p+k+3}")
        A(f"v_min3_f32 v{t3}, v{t3}, v{p+k+2}, v{p+k+3}")
    A(f"v_max3_f32 v{mx}, v{mx}, v{p+14}, v{p+15}")
    A(f"v_min3_f32 v{mn}, v{mn}, v{p+14}, v{p+15}")
    A(f"v_max_f32 v{mx}, v{mx}, v{t2}")
    A(f"v_min_f32 v{mn}, v{mn}, v{t3}")
    A(f"v_mov_b32 v{t2}, v{mx}")
    A(f"v_mov_b32 v{t3}, v{mn}")
    A(f"v_permlane32_swap_b32 v{mx}, v{t2}")
    A(f"v_permlane32_swap_b32 v{mn}, v{t3}")
    A(f"v_max_f32 v{mx}, v{mx}, v{t2}")
    A(f"v_min_f32 v{mn}, v{mn}, v{t3}")
    A(f"v_mul_f32 v{t+4}, s47, v{mx}")
    A(f"v_mul_f32 v{t+6}, s47, v{mn}")
    for j in range(8):
        A(f"v_pk_fma_f32 v[{e+2*j}:{e+2*j+1}], v[{p+2*j}:{p+2*j+1}], s[46:47], v[{t+4}:{t+5}] op_sel:[0,1,0] op_sel_hi:[1,1,0] neg_lo:[0,0,1] neg_hi:[0,0,1]")
        A(f"v_pk_fma_f32 v[{f+2*j}:{f+2*j+1}], v[{p+2*j}:{p+2*j+1}], s[46:47], v[{t+6}:{t+7}] op_sel:[0,1,0] op_sel_hi:[1,1,0] neg_lo:[1,0,0] neg_hi:[1,0,0]")
    for j in range(16):
        A(f"v_exp_f32 v{e+j}, v{e+j}")
        A(f"v_exp_f32 v{f+j}, v{f+j}")
    for (src, s0) in ((e, p), (f, p + 8)):
        A(f"v_pk_add_f32 v[{s0}:{s0+1}], v[{src}:{src+1}], v[{src+2}:{src+3}]")
        A(f"v_pk_add_f32 v[{s0+2}:{s0+3}], v[{src+4}:{src+5}], v[{src+6}:{src+7}]")
        A(f"v_pk_add_f32 v[{s0+4}:{s0+5}], v[{src+8}:{src+9}], v[{src+10}:{src+11}]")
        A(f"v_pk_add_f32 v[{s0+6}:{s0+7}], v[{src+12}:{src+13}], v[{src+14}:{src+15}]")
    for s0 in (p, p + 8):
        A(f"v_pk_add_f32 v[{s0}:{s0+1}], v[{s0}:{s0+1}], v[{s0+2}:{s0+3}]")
        A(f"v_add_f32 v{s0+6}, v{s0+6}, v{s0+7}")
    for s0 in (p, p + 8):
        A(f"v_pk_add_f32 v[{s0}:{s0+1}], v[{s0}:{s0+1}], v[{s0+4}:{s0+5}]")
    for s0 in (p, p + 8):
        A(f"v_add_f32 v{s0}, v{s0}, v{s0+1}")
    for s0 in (p, p + 8):
        A(f"v_fmac_f32 v{s0}, v9, v{s0+6}")
    for s0 in (p, p + 8):
        A(f"v_mov_b32 v{s0+1}, v{s0}")
    for s0 in (p, p + 8):
        A(f"v_permlane32_swap_b32 v{s0}, v{s0+1}")
    for s0 in (p, p + 8):
        A(f"v_add_f32 v{s0}, v{s0}, v{s0+1}")
    for s0 in (p, p + 8):
        A(f"v_rcp_f32 v{s0}, v{s0}")
    for s0 in (p, p + 8):
        A(f"v_mul_f32 v{s0+2}, v9, v{s0}")
    for (src, s0, out) in ((e, p, out_p), (f, p + 8, out_m)):
        for j in range(8):
            r = s0 if j < 6 else s0 + 2
            A(f"v_pk_mul_f32 v[{src+2*j}:{src+2*j+1}], v[{src+2*j}:{src+2*j+1}], v[{r}:{r+1}] op_sel:[0,0] op_sel_hi:[1,0]")
        for j in range(8):
            A(f"v_cvt_pk_bf16_f32 v{out+j}, v{src+2*j}, v{src+2*j+1}")

def role_A(A):
    A.comment("================= ROLE A =================")
    A("""
  s_setprio 3
  s_load_dwordx4 s[36:39], s[0:1], 0
  s_load_dwordx2 s[40:41], s[0:1], 16
  s_load_dwordx2 s[24:25], s[0:1], 104
  s_load_dwordx4 s[32:35], s[0:1], 120
  v_and_b32 v1, 63, v0
  v_lshrrev_b32 v2, 6, v0
  s_and_b32 s3, s2, 7
  s_lshr_b32 s4, s2, 3
  v_readfirstlane_b32 s6, v2
  s_lshr_b32 s5, s3, 1
  s_lshl_b32 s5, s5, 2
  s_and_b32 s42, s4, 3
  s_add_u32 s5, s5, s42
  s_and_b32 s7, s3, 1
  s_lshl_b32 s7, s7, 3
  s_lshr_b32 s42, s4, 2
  s_add_u32 s7, s7, s42
  """)
    A("""
  v_and_b32 v3, 31, v1
  v_lshrrev_b32 v4, 5, v1
  s_lshl_b32 s42, s5, 7
  s_lshl_b32 s43, s6, 5
  s_add_u32 s43, s42, s43
  v_add_u32 v5, s43, v3
  v_mul_u32_u24 v6, 896, v5
  v_lshl_add_u32 v6, v4, 4, v6
  v_lshrrev_b32 v7, 2, v1
  v_mul_u32_u24 v7, 2688, v7
  v_and_b32 v8, 3, v1
  v_lshl_add_u32 v7, v8, 4, v7
  s_mul_i32 s44, s7, 56
  s_mul_i32 s45, s6, 43008
  s_add_u32 s44, s44, s45
  v_add_u32 v7, s44, v7
  s_lshl_b32 s45, s6, 10
  s_waitcnt lgkmcnt(0)
  s_mov_b32 s8, s36
  s_mov_b32 s9, s37
  s_mov_b32 s10, 1835008
  s_mov_b32 s11, 0x00020000
  s_mov_b32 s12, s34
  s_mov_b32 s13, s35
  s_mov_b32 s14, %d
  s_mov_b32 s15, 0x00020000
  s_mov_b32 s16, s38
  s_mov_b32 s17, s39
  s_mov_b32 s18, 1204224
  s_mov_b32 s19, 0x00020000
  s_mov_b32 s20, s40
  s_mov_b32 s21, s41
  s_mov_b32 s22, 25088
  s_mov_b32 s23, 0x00020000
  """ % WS_SIZE)
    for c in range(7):
        for ks in range(4 * c, 4 * c + 4):
            A(f"buffer_load_dwordx4 v[{X+4*ks}:{X+4*ks+3}], v6, s[8:11], 0 offen offset:{32*ks}")
        A(f"s_add_u32 m0, s45, {R0 + 4096*c}")
        A(f"s_mov_b32 s48, {172032*c + 896}")
        A("buffer_load_dwordx4 v7, s[16:19], s48 offen lds")
        A(f"s_add_u32 m0, s45, {R1 + 4096*c}")
        A(f"s_mov_b32 s49, {172032*c + 1792}")
        A("buffer_load_dwordx4 v7, s[16:19], s49 offen lds")
    A("""
  v_cmp_lt_u32 vcc, 27, v3
  v_subrev_u32 v10, 4, v3
  s_mul_i32 s48, s7, 1568
  v_cndmask_b32 v10, v3, v10, vcc
  v_lshlrev_b32 v10, 1, v10
  v_mul_u32_u24 v11, 224, v4
  v_add3_u32 v10, v10, v11, s48
  v_cmp_eq_u32 s[52:53], 1, v4
  v_mov_b32 v11, 0x40000000
  v_cndmask_b32 v11, v10, v11, s[52:53]
  """)
    PH = 12
    for s in range(2):
        for i in range(8):
            cc = 16 * s + (i & 3) + 8 * (i >> 2)
            vo = 11 if (s == 1 and i >= 4) else 10
            A(f"buffer_load_ushort v{PH+8*s+i}, v{vo}, s[20:23], 0 offen offset:{cc*56}")
    A("""
  v_lshlrev_b32 v28, 1, v0
  global_load_ushort v29, v28, s[24:25]
  v_min_u32 v30, 191, v0
  v_lshlrev_b32 v30, 1, v30
  global_load_ushort v30, v30, s[24:25] offset:512
  """)
    NLATE = 18
    A("""
  v_mov_b32 v9, 1.0
  v_cndmask_b32 v9, v9, 0, s[52:53]
  s_mov_b32 s47, 0x%x
  s_mov_b32 s46, 0x%x
  v_lshlrev_b32 v31, 2, v4
  v_sub_u32 v31, v3, v31
  """ % (LOG2E, LOG2E))
    for s in range(2):
        for j in range(4):
            i0, i1 = 2 * j, 2 * j + 1
            f0 = 16 * s + (i0 & 3) + 8 * (i0 >> 2); f1 = 16 * s + (i1 & 3) + 8 * (i1 >> 2)
            r = IDF + 4 * s + j
            A(f"v_cmp_eq_u32 vcc, {f0}, v31")
            A(f"v_cmp_eq_u32 s[54:55], {f1}, v31")
            A(f"v_mov_b32 v{r}, 0")
            A(f"v_mov_b32 v2, 0x3f80")
            A(f"v_cndmask_b32 v{r}, v{r}, v2, vcc")
            A(f"v_mov_b32 v2, 0x3f800000")
            A(f"v_cndmask_b32 v{r}, v{r}, v2, s[54:55]")
    A("""
  v_and_b32 v2, 15, v1
  v_lshrrev_b32 v8, 4, v1
  v_lshrrev_b32 v31, 1, v8
  v_lshlrev_b32 v31, 3, v31
  v_lshrrev_b32 v28, 2, v2
  v_add_u32 v31, v31, v28
  v_lshlrev_b32 v31, 6, v31
  v_and_b32 v8, 1, v8
  v_lshl_add_u32 v31, v8, 5, v31
  v_and_b32 v2, 3, v2
  v_lshl_add_u32 v8, v2, 3, v31
  """)
    for i in range(16):
        A(f"v_mov_b32 v{ACK+i}, 0")
        A(f"v_mov_b32 v{ACV+i}, 0")
    def trreads(c, segs):
        b = FR + 32 * (c & 1)
        for kk in range(4):
            ks = 4 * c + kk
            for si, R in enumerate(segs):
                r = b + 16 * si + 4 * kk if len(segs) == 2 else b + 4 * kk
                A(f"ds_read_b64_tr_b16 v[{r}:{r+1}], v8 offset:{R + 1024*ks}")
                A(f"ds_read_b64_tr_b16 v[{r+2}:{r+3}], v8 offset:{R + 1024*ks + 256}")
    def vm(c): return 6 * (6 - c) + NLATE
    A(f"s_waitcnt vmcnt({vm(0)})")
    A("s_barrier")
    trreads(0, [R0, R1])
    for c in range(7):
        A("s_waitcnt lgkmcnt(0)")
        if c < 6:
            A(f"s_waitcnt vmcnt({vm(c+1)})")
            A("s_barrier")
            trreads(c + 1, [R0, R1])
        b = FR + 32 * (c & 1)
        for kk in range(4):
            ks = 4 * c + kk
            xr = X + 4 * ks
            A(f"v_mfma_f32_32x32x16_bf16 v[{ACK}:{ACK+15}], v[{b+4*kk}:{b+4*kk+3}], v[{xr}:{xr+3}], v[{ACK}:{ACK+15}]")
            A(f"v_mfma_f32_32x32x16_bf16 v[{ACV}:{ACV+15}], v[{xr}:{xr+3}], v[{b+16+4*kk}:{b+16+4*kk+3}], v[{ACV}:{ACV+15}]")
    A("s_barrier")
    for c in range(7):
        A(f"s_add_u32 m0, s45, {R0 + 4096*c}")
        A(f"s_mov_b32 s48, {172032*c}")
        A("buffer_load_dwordx4 v7, s[16:19], s48 offen lds")
    A("s_waitcnt vmcnt(7)")
    for s in range(2):
        for j in range(4):
            A(f"v_lshl_or_b32 v{PHI+4*s+j}, v{PH+8*s+2*j+1}, 16, v{PH+8*s+2*j}")
    KB = 64
    PA = 72
    for j in range(8): A(f"v_cvt_pk_bf16_f32 v{KB+j}, v{ACK+2*j}, v{ACK+2*j+1}")
    A(f"v_mfma_f32_32x32x16_bf16 v[{PA}:{PA+15}], v[{PHI}:{PHI+3}], v[{KB}:{KB+3}], 0")
    A(f"v_mfma_f32_32x32x16_bf16 v[{PA}:{PA+15}], v[{PHI+4}:{PHI+7}], v[{KB+4}:{KB+7}], v[{PA}:{PA+15}]")
    VB = 12
    A("v_cmp_eq_u32 s[54:55], 28, v3")
    A("v_mov_b32 v2, 0x3f803f80")
    for j in range(8): A(f"v_cvt_pk_bf16_f32 v{VB+j}, v{ACV+2*j}, v{ACV+2*j+1}")
    for j in range(8): A(f"v_cndmask_b32 v{VB+j}, v{VB+j}, v2, s[54:55]")
    OP, OM = 32, 40
    softmax_feats(A, PA, OP, OM, 88)
    TP, TM = 64, 80
    for (src, dst) in ((OP, TP), (OM, TM)):
        A(f"v_mfma_f32_32x32x16_bf16 v[{dst}:{dst+15}], v[{src}:{src+3}], v[{IDF}:{IDF+3}], 0")
        A(f"v_mfma_f32_32x32x16_bf16 v[{dst}:{dst+15}], v[{src+4}:{src+7}], v[{IDF+4}:{IDF+7}], v[{dst}:{dst+15}]")
    TPp, TMp = 96, 104
    for (src, dst) in ((TP, TPp), (TM, TMp)):
        for j in range(8): A(f"v_cvt_pk_bf16_f32 v{dst+j}, v{src+2*j}, v{src+2*j+1}")
    for (src, dst) in ((TPp, TP), (TMp, TM)):
        A(f"v_mfma_f32_32x32x16_bf16 v[{dst}:{dst+15}], v[{src}:{src+3}], v[{VB}:{VB+3}], 0")
        A(f"v_mfma_f32_32x32x16_bf16 v[{dst}:{dst+15}], v[{src+4}:{src+7}], v[{VB+4}:{VB+7}], v[{dst}:{dst+15}]")
    A(f"""
  v_lshlrev_b32 v2, 4, v1
  s_lshl_b32 s48, s6, 13
  s_add_u32 s48, s48, {R1}
  v_add_u32 v10, s48, v2
  s_lshl_b32 s48, s6, 11
  s_add_u32 s48, s48, {R1}
  v_add_u32 v11, s48, v2
  """)
    for q in range(8): A(f"ds_write_b128 v10, v[{64+4*q}:{64+4*q+3}] offset:{1024*q}")
    A("s_waitcnt lgkmcnt(0)")
    A("s_barrier")
    for ww in range(4):
        for qq in range(2):
            r = 64 + 8 * ww + 4 * qq
            A(f"ds_read_b128 v[{r}:{r+3}], v11 offset:{8192*ww + 1024*qq}")
    A("s_waitcnt lgkmcnt(0)")
    for i in range(0, 8, 2):
        A(f"v_pk_add_f32 v[{64+i}:{65+i}], v[{64+i}:{65+i}], v[{72+i}:{73+i}]")
        A(f"v_pk_add_f32 v[{80+i}:{81+i}], v[{80+i}:{81+i}], v[{88+i}:{89+i}]")
    for i in range(0, 8, 2):
        A(f"v_pk_add_f32 v[{64+i}:{65+i}], v[{64+i}:{65+i}], v[{80+i}:{81+i}]")
    A(f"""
  s_lshl_b32 s48, s6, 11
  v_add_u32 v26, s48, v2
  s_lshl_b32 s49, s7, 17
  s_lshl_b32 s50, s5, 13
  s_add_u32 s50, s50, s49
  s_add_u32 s50, s50, {KVP_OFF}
  s_add_u32 s49, s49, {KVP_OFF}
  buffer_store_dwordx4 v[64:67], v26, s[12:15], s50 offen sc1
  buffer_store_dwordx4 v[68:71], v26, s[12:15], s50 offen offset:1024 sc1
  s_waitcnt vmcnt(0)
  s_barrier
  s_lshl_b32 s51, s7, 2
  s_add_u32 s51, s51, 64
  v_mov_b32 v27, s51
  s_cmp_lg_u32 s6, 0
  s_cbranch_scc1 LA_nopub
  v_mov_b32 v2, 1
  s_mov_b64 s[56:57], exec
  s_mov_b64 exec, 1
  global_atomic_add v27, v2, s[32:33]
  s_mov_b64 exec, s[56:57]
LA_nopub:
  """)
    A(f"""
  v_lshlrev_b32 v2, 6, v0
  ds_write_b16 v2, v29 offset:{R0 + 58}
  v_cmp_gt_u32 vcc, 192, v0
  s_and_saveexec_b64 s[56:57], vcc
  ds_write_b16 v2, v30 offset:{R0 + 58 + 16384}
  s_mov_b64 exec, s[56:57]
  s_waitcnt lgkmcnt(0)
  s_barrier
  """)
    AQ = 48
    for i in range(16): A(f"v_mov_b32 v{AQ+i}, 0")
    trreads(0, [R0])
    for c in range(7):
        A("s_waitcnt lgkmcnt(0)")
        if c < 6: trreads(c + 1, [R0])
        b = FR + 32 * (c & 1)
        for kk in range(4):
            ks = 4 * c + kk
            xr = X + 4 * ks
            A(f"v_mfma_f32_32x32x16_bf16 v[{AQ}:{AQ+15}], v[{b+4*kk}:{b+4*kk+3}], v[{xr}:{xr+3}], v[{AQ}:{AQ+15}]")
    for j in range(8): A(f"v_cvt_pk_bf16_f32 v{KB+j}, v{AQ+2*j}, v{AQ+2*j+1}")
    A(f"v_mfma_f32_32x32x16_bf16 v[{PA}:{PA+15}], v[{PHI}:{PHI+3}], v[{KB}:{KB+3}], 0")
    A(f"v_mfma_f32_32x32x16_bf16 v[{PA}:{PA+15}], v[{PHI+4}:{PHI+7}], v[{KB+4}:{KB+7}], v[{PA}:{PA+15}]")
    A(f"""
  v_and_b32 v10, 0xffff0000, v{KB+6}
  v_mul_f32 v10, s47, v10
  v_sub_f32 v10, 0, v10
  v_exp_f32 v10, v10
  v_add_f32 v10, 1.0, v10
  v_rcp_f32 v10, v10
  v_cvt_pk_bf16_f32 v10, v10, v10
  v_lshlrev_b32 v10, 16, v10
  v_lshlrev_b32 v11, 2, v5
  s_cmp_lg_u32 s7, 0
  s_cbranch_scc1 LA_nog
  s_mov_b64 s[56:57], exec
  s_mov_b64 exec, s[52:53]
  s_mov_b32 s48, {G_OFF}
  buffer_store_dword v10, v11, s[12:15], s48 offen
  s_mov_b64 exec, s[56:57]
LA_nog:
  """)
    softmax_feats(A, PA, OP, OM, 88)
    A("""
  s_cmp_lg_u32 s6, 0
  s_cbranch_scc1 LA_nopoll
  s_mov_b32 s51, 0
LA_poll:
  global_load_dword v2, v27, s[32:33] sc1
  s_waitcnt vmcnt(0)
  v_readfirstlane_b32 s48, v2
  s_cmp_ge_u32 s48, 16
  s_cbranch_scc1 LA_nopoll
  s_sleep 1
  s_add_u32 s51, s51, 1
  s_cmp_lt_u32 s51, 0x40000
  s_cbranch_scc1 LA_poll
LA_nopoll:
  s_barrier
  """)
    PL = 64
    for pp in range(16):
        A(f"s_add_u32 s48, s49, {8192*pp}")
        A(f"buffer_load_dwordx4 v[{PL+8*pp}:{PL+8*pp+3}], v26, s[12:15], s48 offen sc1")
        A(f"buffer_load_dwordx4 v[{PL+8*pp+4}:{PL+8*pp+7}], v26, s[12:15], s48 offen offset:1024 sc1")
    for step, wait in ((0, 16), (1, 0)):
        A(f"s_waitcnt vmcnt({wait})")
        base = PL + 64 * step
        for lvl in (8, 16, 32):
            for b0 in range(base, base + 64, 2 * lvl):
                for i in range(0, 8, 2):
                    A(f"v_pk_add_f32 v[{b0+i}:{b0+i+1}], v[{b0+i}:{b0+i+1}], v[{b0+lvl+i}:{b0+lvl+i+1}]")
    for i in range(0, 8, 2):
        A(f"v_pk_add_f32 v[{PL+i}:{PL+i+1}], v[{PL+i}:{PL+i+1}], v[{PL+64+i}:{PL+64+i+1}]")
    for j in range(4): A(f"v_cvt_pk_bf16_f32 v{72+j}, v{PL+2*j}, v{PL+2*j+1}")
    A(f"""
  v_lshlrev_b32 v2, 4, v1
  s_lshl_b32 s48, s6, 10
  s_add_u32 s48, s48, {KVF}
  v_add_u32 v10, s48, v2
  ds_write_b128 v10, v[72:75]
  s_waitcnt lgkmcnt(0)
  s_barrier
  """)
    for fi in range(4): A(f"ds_read_b128 v[{80+4*fi}:{80+4*fi+3}], v2 offset:{KVF + 1024*fi}")
    NUM = 96
    A("s_waitcnt lgkmcnt(0)")
    srcs = [OP, OP + 4, OM, OM + 4]
    for fi in range(4):
        c = "0" if fi == 0 else f"v[{NUM}:{NUM+15}]"
        A(f"v_mfma_f32_32x32x16_bf16 v[{NUM}:{NUM+15}], v[{80+4*fi}:{80+4*fi+3}], v[{srcs[fi]}:{srcs[fi]+3}], {c}")
    NB = 112
    for j in range(8): A(f"v_cvt_pk_bf16_f32 v{NB+j}, v{NUM+2*j}, v{NUM+2*j+1}")
    A(f"""
  v_lshlrev_b32 v10, 16, v{NB+6}
  v_mov_b32 v11, v10
  v_permlane32_swap_b32 v11, v10
  v_add_f32 v10, 0x358637bd, v10
  v_cvt_pk_bf16_f32 v10, v10, v10
  v_lshlrev_b32 v10, 16, v10
  v_rcp_f32 v10, v10
  """)
    for j in range(8):
        A(f"v_lshlrev_b32 v{NUM+2*j}, 16, v{NB+j}")
        A(f"v_and_b32 v{NUM+2*j+1}, 0xffff0000, v{NB+j}")
    for j in range(8):
        A(f"v_pk_mul_f32 v[{NUM+2*j}:{NUM+2*j+1}], v[{NUM+2*j}:{NUM+2*j+1}], v[10:11] op_sel:[0,0] op_sel_hi:[1,0]")
    for j in range(8): A(f"v_cvt_pk_bf16_f32 v{NB+j}, v{NUM+2*j}, v{NUM+2*j+1}")
    A(f"""
  v_mul_u32_u24 v2, 896, v5
  v_lshl_add_u32 v2, v4, 3, v2
  s_mul_i32 s48, s7, 56
  s_add_u32 s48, s48, {O_OFF}
  v_mov_b32 v11, 0x40000000
  v_cndmask_b32 v11, v2, v11, s[52:53]
  """)
    for q in range(4):
        vo = 11 if q == 3 else 2
        A(f"buffer_store_dwordx2 v[{NB+2*q}:{NB+2*q+1}], v{vo}, s[12:15], s48 offen offset:{16*q}")
    A("s_endpgm")
```

```python
from asmlib import Asm

LOG2E = 0x3FB8AA3B
INV2PI = 0x3E22F983
XT_OFF = 0x000000
YT_OFF = 0x200000
KVP_OFF = 0x400000
O_OFF = 0x600000
G_OFF = 0x800000
WS_SIZE = 0x1000000
STG = 8704
CH_REG = 2 * STG
CPY = 4160
U_BASE = 2 * CH_REG
U_SZ = 4608
EX_BASE = U_BASE + 2 * U_SZ
B_LDS = EX_BASE + 4 * 2048

def interleave(*lists):
    out = []; idx = [0] * len(lists)
    while any(idx[i] < len(lists[i]) for i in range(len(lists))):
        for i, l in enumerate(lists):
            if idx[i] < len(l):
                out.append(l[idx[i]]); idx[i] += 1
    return out

def cmul(dst, z, w, t, conj=False):
    a = [f"v_pk_mul_f32 v[{t}:{t+1}], v[{z}:{z+1}], v[{w}:{w+1}] op_sel:[0,0] op_sel_hi:[1,0]"]
    if not conj:
        a.append(f"v_pk_fma_f32 v[{dst}:{dst+1}], v[{z}:{z+1}], v[{w}:{w+1}], v[{t}:{t+1}] op_sel:[1,1,0] op_sel_hi:[0,1,1] neg_lo:[1,0,0]")
    else:
        a.append(f"v_pk_fma_f32 v[{dst}:{dst+1}], v[{z}:{z+1}], v[{w}:{w+1}], v[{t}:{t+1}] op_sel:[1,1,0] op_sel_hi:[0,1,1] neg_hi:[1,0,0]")
    return a

def role_B(A):
    A.comment("================= ROLE B =================")
    A("""
  s_sub_u32 s3, s2, 256
  s_load_dwordx8 s[16:23], s[0:1], 40
  s_load_dwordx4 s[24:27], s[0:1], 72
  s_load_dwordx2 s[28:29], s[0:1], 88
  s_load_dwordx4 s[32:35], s[0:1], 120
  s_load_dwordx2 s[36:37], s[0:1], 0
  v_and_b32 v1, 63, v0
  v_lshrrev_b32 v2, 6, v0
  s_lshr_b32 s4, s3, 4
  s_and_b32 s5, s3, 15
  v_readfirstlane_b32 s6, v2
  """)
    A("""
  s_lshr_b32 s38, s6, 1
  s_and_b32 s39, s6, 1
  s_lshl_b32 s7, s3, 1
  s_add_u32 s7, s7, s38
  s_mul_i32 s42, s6, %d
  """ % STG)
    A("""
  s_lshl_b32 s40, s5, 7
  s_lshl_b32 s41, s6, 5
  s_add_u32 s43, s40, s41
  s_mul_i32 s40, s43, 896
  s_lshl_b32 s41, s4, 6
  s_add_u32 s40, s40, s41
  s_add_u32 s41, s40, 14336
  v_lshrrev_b32 v3, 2, v1
  v_mul_u32_u24 v3, 896, v3
  v_and_b32 v4, 3, v1
  v_lshl_add_u32 v3, v4, 4, v3
  v_lshlrev_b32 v5, 2, v1
  s_lshl_b32 s44, s7, 9
  s_lshl_b32 s45, s39, 8
  s_add_u32 s44, s44, s45
  v_add_u32 v5, s44, v5
  s_lshl_b32 s45, s7, 1
  v_mov_b32 v6, s45
  s_waitcnt lgkmcnt(0)
  s_mov_b32 s8, s36
  s_mov_b32 s9, s37
  s_mov_b32 s10, 1835008
  s_mov_b32 s11, 0x00020000
  s_mov_b32 s12, s34
  s_mov_b32 s13, s35
  s_mov_b32 s14, %d
  s_mov_b32 s15, 0x00020000
  s_mov_b32 m0, s42
  s_add_u32 s45, s42, 1024
  buffer_load_dwordx4 v3, s[8:11], s40 offen lds
  s_mov_b32 m0, s45
  s_nop 0
  buffer_load_dwordx4 v3, s[8:11], s41 offen lds
  global_load_dword v16, v5, s[16:17]
  global_load_dword v17, v5, s[18:19]
  global_load_dword v18, v5, s[20:21]
  global_load_dword v19, v5, s[22:23]
  global_load_dword v20, v5, s[24:25]
  global_load_dword v21, v5, s[26:27]
  global_load_ushort v22, v6, s[28:29]
  """ % WS_SIZE)
    A("""
  v_and_b32 v7, 15, v1
  v_lshrrev_b32 v8, 4, v1
  v_lshrrev_b32 v9, 2, v7
  v_lshl_add_u32 v9, v8, 3, v9
  v_lshlrev_b32 v9, 6, v9
  v_and_b32 v10, 3, v7
  v_lshl_add_u32 v9, v10, 3, v9
  v_add_u32 v9, s42, v9
  v_lshlrev_b32 v10, 12, v7
  v_lshl_add_u32 v10, v8, 4, v10
  s_lshl_b32 s45, s4, 17
  s_lshl_b32 s46, s43, 1
  s_add_u32 s45, s45, s46
  s_add_u32 s45, s45, %d
  s_add_u32 s46, s45, 65536
  s_waitcnt vmcnt(7)
  ds_read_b64_tr_b16 v[24:25], v9
  ds_read_b64_tr_b16 v[26:27], v9 offset:256
  ds_read_b64_tr_b16 v[28:29], v9 offset:32
  ds_read_b64_tr_b16 v[30:31], v9 offset:288
  s_waitcnt lgkmcnt(2)
  buffer_store_dwordx4 v[24:27], v10, s[12:15], s45 offen sc1
  s_waitcnt lgkmcnt(0)
  buffer_store_dwordx4 v[28:31], v10, s[12:15], s46 offen sc1
  """ % XT_OFF)
    A("""
  v_lshlrev_b32 v11, 2, v1
  v_add_u32 v11, s42, v11
  v_and_b32 v12, 31, v1
  v_mul_u32_u24 v12, 272, v12
  v_lshrrev_b32 v13, 5, v1
  v_lshl_add_u32 v12, v13, 4, v12
  v_add_u32 v12, s42, v12
  s_mov_b32 s47, 0x%x
  s_mov_b32 s48, 0x%x
  s_waitcnt vmcnt(2)
  v_lshlrev_b32 v22, 16, v22
  v_mul_f32 v22, s47, v22
  v_exp_f32 v22, v22
  v_cvt_pk_bf16_f32 v22, v22, v22
  v_lshlrev_b32 v22, 16, v22
  """ % (LOG2E, INV2PI))
    A("""
  s_waitcnt vmcnt(0)
  s_barrier
  s_cmp_lg_u32 s6, 0
  s_cbranch_scc1 LB_nopub
  v_mov_b32 v2, 1
  s_lshl_b32 s45, s4, 2
  v_mov_b32 v3, s45
  s_mov_b64 s[50:51], exec
  s_mov_b64 exec, 1
  global_atomic_add v3, v2, s[32:33]
  s_mov_b64 exec, s[50:51]
LB_nopub:
  """)
    ACC = 96
    for i in range(16): A(f"v_mov_b32 v{ACC+i}, 0")
    A("s_mov_b32 s49, 0")
    A.label("LB_pass")
    ar, th, dbr, dbi = 32, 33, 34, 35
    W, E, E2, E4, E8, G = 36, 38, 40, 42, 44, 46
    t0, t1, t2 = 48, 50, 52
    Z1, Z2, Z3, Z4 = 54, 56, 58, 60
    P = 62
    c1, c2, c3, c4 = 64, 65, 66, 67
    AF = 112
    BF = 144
    A(f"""
  v_lshlrev_b32 v{ar}, 16, v16
  v_lshlrev_b32 v{th}, 16, v17
  v_lshlrev_b32 v{dbr}, 16, v18
  v_lshlrev_b32 v{dbi}, 16, v19
  v_lshlrev_b32 v{t0}, 16, v20
  v_lshlrev_b32 v{t0+1}, 16, v21
  v_mul_f32 v{ar}, v{ar}, v22
  v_mul_f32 v{th}, v{th}, v22
  v_mul_f32 v{dbr}, v{dbr}, v22
  v_mul_f32 v{dbi}, v{dbi}, v22
  v_mul_f32 v{ar}, s47, v{ar}
  v_mul_f32 v{th}, s48, v{th}
  """)
    A("\n".join(cmul(W, t0, dbr, t1)))
    def cis(dst, l, m, ph):
        return [f"v_mul_f32 v{m}, {l}, v{ar}" if isinstance(l, str) else f"v_mul_f32 v{m}, {float(l)}, v{ar}",
                f"v_mul_f32 v{ph}, {l}, v{th}" if isinstance(l, str) else f"v_mul_f32 v{ph}, {float(l)}, v{th}",
                f"v_exp_f32 v{m}, v{m}",
                f"v_fract_f32 v{ph}, v{ph}",
                f"v_cos_f32 v{dst}, v{ph}",
                f"v_sin_f32 v{dst+1}, v{ph}",
                f"v_pk_mul_f32 v[{dst}:{dst+1}], v[{dst}:{dst+1}], v[{m}:{m+1}] op_sel:[0,0] op_sel_hi:[1,0]"]
    import struct
    fl = lambda x: "0x%08x" % struct.unpack('<I', struct.pack('<f', x))[0]
    l1 = cis(E, fl(1.0), t0, t0+1); l8 = cis(E8, fl(8.0), t1, t1+1); l256 = cis(G, fl(256.0), t2, t2+1)
    for x in interleave(l1, l8, l256): A(x)
    A("\n".join(cmul(E2, E, E, t0)))
    A("\n".join(cmul(E4, E2, E2, t0)))
    def wr(z, rows, tmp):
        o = [f"v_cvt_pk_bf16_f32 v{tmp}, v{z}, v{z+1}"]
        for r in rows: o.append(f"ds_write_b32 v11, v{tmp} offset:{r*272}")
        return o
    ch1 = wr(W, [0], c1)
    prev = W
    for p in range(1, 8):
        ch1 += cmul(Z1, prev, E, t0) + wr(Z1, [p], c1); prev = Z1
    P256, P512, P768, PX = 68, 70, 72, 74
    pre = cmul(P256, W, G, t1) + cmul(P512, P256, G, t1) + cmul(P768, P512, G, t1)
    ch2 = wr(P256, [8], c2) + cmul(Z2, P256, E2, t1) + wr(Z2, [9], c2) + cmul(Z2, Z2, E2, t1) + wr(Z2, [10, 12], c2) \
        + cmul(Z2, Z2, E2, t1) + wr(Z2, [13], c2) + cmul(Z2, Z2, E2, t1) + wr(Z2, [14], c2)
    ch3 = wr(P512, [16], c3) + cmul(Z3, P512, E4, t2) + wr(Z3, [17, 20], c3) + cmul(Z3, Z3, E4, t2) + wr(Z3, [21], c3) \
        + wr(P768, [18], c3) + cmul(Z3, P768, E4, t2) + wr(Z3, [19, 22], c3) + cmul(Z3, Z3, E4, t2) + wr(Z3, [23], c3)
    t3 = 76
    ch4 = []
    prevp = P768
    for i in range(4):
        ch4 += cmul(PX, prevp, G, t3) + wr(PX, [24 + i], c4) + cmul(Z4, PX, E8, t3) + wr(Z4, [28 + i], c4)
        prevp = PX
    for x in pre: A(x)
    for x in interleave(ch1, ch2, ch3, ch4): A(x)
    A("s_waitcnt lgkmcnt(0)")
    for s in range(8): A(f"ds_read_b128 v[{AF+4*s}:{AF+4*s+3}], v12 offset:{32*s}")
    E16, E32, E64 = 36, 38, 40
    A("\n".join(cmul(E16, E8, E8, t0)))
    A("\n".join(cmul(E32, E16, E16, t0)))
    A("\n".join(cmul(E64, E32, E32, t0)))
    S8, S16, S24 = 42, 46, 68
    A("\n".join(cmul(S16, E64, E64, t0)))
    A("\n".join(cmul(S24, S16, E64, t0)))
    A(f"v_mov_b32 v{S8}, v{E64}")
    A(f"v_xor_b32 v{S8+1}, 0x80000000, v{E64+1}")
    A(f"v_xor_b32 v{S16+1}, 0x80000000, v{S16+1}")
    A(f"v_xor_b32 v{S24+1}, 0x80000000, v{S24+1}")
    A(f"v_mov_b32 v{Z1}, 1.0")
    A(f"v_mov_b32 v{Z1+1}, 0")
    A("s_waitcnt lgkmcnt(0)")
    ys = []
    for ci, (z, start, tt, cc) in enumerate([(Z1, Z1, t0, c1), (Z2, S8, t1, c2), (Z3, S16, t2, c3), (Z4, S24, t3, c4)]):
        l = wr(start, [8 * ci], cc)
        prev = start
        for j in range(1, 8):
            l += cmul(z, prev, E8, tt, conj=True) + wr(z, [8 * ci + j], cc); prev = z
        ys.append(l)
    for x in interleave(*ys): A(x)
    A("s_waitcnt lgkmcnt(0)")
    for s in range(8): A(f"ds_read_b128 v[{BF+4*s}:{BF+4*s+3}], v12 offset:{32*s}")
    for s in range(8):
        A(f"s_waitcnt lgkmcnt({7-s})")
        A(f"v_mfma_f32_32x32x16_bf16 v[{ACC}:{ACC+15}], v[{AF+4*s}:{AF+4*s+3}], v[{BF+4*s}:{BF+4*s+3}], v[{ACC}:{ACC+15}]")
    for i in range(16, 22): A(f"v_lshrrev_b32 v{i}, 16, v{i}")
    A("""
  s_add_u32 s49, s49, 1
  s_cmp_lt_u32 s49, 2
  s_cbranch_scc1 LB_pass
  """)
    A(f"""
  v_lshlrev_b32 v2, 4, v1
  s_lshl_b32 s45, s6, 11
  s_add_u32 s45, s45, {EX_BASE}
  v_add_u32 v3, s45, v2
  s_xor_b32 s46, s6, 1
  s_lshl_b32 s46, s46, 11
  s_add_u32 s46, s46, {EX_BASE}
  v_add_u32 v4, s46, v2
  s_nop 7
  s_nop 7
  s_cmp_eq_u32 s39, 0
  s_cbranch_scc1 LB_ex0
  ds_write_b128 v3, v[{ACC}:{ACC+3}]
  ds_write_b128 v3, v[{ACC+4}:{ACC+7}] offset:1024
  s_branch LB_ex1
LB_ex0:
  ds_write_b128 v3, v[{ACC+8}:{ACC+11}]
  ds_write_b128 v3, v[{ACC+12}:{ACC+15}] offset:1024
LB_ex1:
  s_cmp_lg_u32 s6, 0
  s_cbranch_scc1 LB_nopoll
  s_lshl_b32 s45, s4, 2
  v_mov_b32 v5, s45
  s_mov_b32 s46, 0
LB_poll:
  global_load_dword v6, v5, s[32:33] sc1
  s_waitcnt vmcnt(0)
  v_readfirstlane_b32 s45, v6
  s_cmp_ge_u32 s45, 16
  s_cbranch_scc1 LB_nopoll
  s_sleep 2
  s_add_u32 s46, s46, 1
  s_cmp_lt_u32 s46, 0x40000
  s_cbranch_scc1 LB_poll
LB_nopoll:
  s_waitcnt lgkmcnt(0)
  s_barrier
  """)
    A(f"""
  v_lshrrev_b32 v5, 7, v0
  v_and_b32 v6, 127, v0
  s_lshl_b32 s45, s3, 13
  v_lshlrev_b32 v7, 12, v5
  v_lshl_add_u32 v7, v6, 5, v7
  s_add_u32 s45, s45, {XT_OFF}
  buffer_load_dwordx4 v[80:83], v7, s[12:15], s45 offen sc1
  buffer_load_dwordx4 v[84:87], v7, s[12:15], s45 offen offset:16 sc1
  ds_read_b128 v[24:27], v4
  ds_read_b128 v[28:31], v4 offset:1024
  v_mul_u32_u24 v8, {U_SZ}, v5
  v_lshl_add_u32 v8, v6, 5, v8
  v_add_u32 v8, {U_BASE + 512}, v8
  v_and_b32 v9, 31, v1
  v_lshrrev_b32 v10, 5, v1
  s_mul_i32 s46, s38, {CH_REG}
  v_lshlrev_b32 v13, 4, v9
  v_lshl_add_u32 v13, v10, 3, v13
  v_sub_u32 v13, {2*2044}, v13
  v_add_u32 v13, s46, v13
  v_cmp_eq_u32 s[52:53], 1, v10
  s_cmp_eq_u32 s39, 1
  s_waitcnt lgkmcnt(0)
  s_cbranch_scc1 LB_w1
  """)
    for i in range(8): A(f"v_add_f32 v{24+i}, v{24+i}, v{ACC+i}")
    A(f"""
  v_cvt_pk_bf16_f32 v32, v27, v26
  v_cvt_pk_bf16_f32 v33, v25, v24
  v_cvt_pk_bf16_f32 v34, v30, v29
  v_cvt_pk_bf16_f32 v35, v28, v28
  v_subrev_u32 v14, 512, v13
  ds_write_b64 v13, v[32:33]
  ds_write_b64 v14, v[34:35]
  v_mov_b32 v36, 0
  v_mov_b32 v37, 0
  v_lshlrev_b32 v14, 3, v1
  v_add_u32 v14, s46, v14
  s_mov_b64 s[50:51], exec
  s_mov_b64 exec, 0xff
  ds_write_b64 v14, v[36:37] offset:4096
  s_mov_b64 exec, s[50:51]
  s_branch LB_w2
LB_w1:
  """)
    for i in range(8): A(f"v_add_f32 v{24+i}, v{24+i}, v{ACC+8+i}")
    A("""
  v_cndmask_b32 v32, v24, v25, s[52:53]
  v_cndmask_b32 v33, v26, v27, s[52:53]
  v_cvt_pk_bf16_f32 v34, v25, v32
  v_cvt_pk_bf16_f32 v35, v24, v24
  v_cvt_pk_bf16_f32 v36, v27, v33
  v_cvt_pk_bf16_f32 v37, v26, v26
  v_subrev_u32 v14, 1024, v13
  ds_write_b64 v14, v[34:35]
  v_subrev_u32 v14, 1536, v13
  ds_write_b64 v14, v[36:37]
  v_and_b32 v14, 1, v9
  v_and_b32 v14, v14, v10
  v_cmp_eq_u32 s[54:55], 1, v14
  """)
    for i in range(4):
        f = 28 + i
        A(f"""
  v_mov_b32 v38, v{f}
  v_mov_b32 v39, v{f}
  v_permlane32_swap_b32 v38, v39
  v_cndmask_b32 v38, v38, v{f}, s[54:55]
  v_cvt_pk_bf16_f32 v{40+2*i}, v{f}, v{f}
  v_cvt_pk_bf16_f32 v{41+2*i}, v{f}, v38
  v_subrev_u32 v14, {2048 + 512*i}, v13
  ds_write_b64 v14, v[{40+2*i}:{41+2*i}]
  """)
    A.label("LB_w2")
    A(f"""
  v_mov_b32 v36, 0
  v_mov_b32 v37, 0
  v_mov_b32 v38, 0
  v_mov_b32 v39, 0
  v_mul_u32_u24 v14, {U_SZ}, v5
  v_lshl_add_u32 v14, v6, 4, v14
  v_add_u32 v14, {U_BASE}, v14
  v_cmp_gt_u32 vcc, 32, v6
  s_and_saveexec_b64 s[50:51], vcc
  ds_write_b128 v14, v[36:39]
  s_mov_b64 exec, s[50:51]
  s_waitcnt lgkmcnt(0)
  s_barrier
  """)
    A(f"""
  s_lshl_b32 s45, s39, 10
  s_add_u32 s45, s45, s46
  v_lshlrev_b32 v14, 4, v1
  v_add_u32 v14, s45, v14
  ds_read_b128 v[24:27], v14
  ds_read_b64 v[28:29], v14 offset:16
  ds_read_b128 v[40:43], v14 offset:2048
  ds_read_b64 v[44:45], v14 offset:2064
  v_and_b32 v15, 1, v1
  v_lshlrev_b32 v15, 4, v15
  v_add_u32 v15, s46, v15
  ds_write_b128 v15, v[36:39] offset:{4096 + CPY}
  ds_write_b128 v15, v[36:39] offset:{4096 + 2*CPY}
  ds_write_b128 v15, v[36:39] offset:{4096 + 3*CPY}
  """)
    for (d, off, wait) in ((24, 0, 5), (40, 2048, 3)):
        A(f"s_waitcnt lgkmcnt({wait})")
        o1, o3 = 48, 52
        for k in range(4): A(f"v_alignbit_b32 v{o1+k}, v{d+k+1}, v{d+k}, 16")
        for k in range(4): A(f"v_alignbit_b32 v{o3+k}, v{d+k+2}, v{d+k+1}, 16")
        A(f"v_mov_b32 v56, v{d+1}\nv_mov_b32 v57, v{d+2}\nv_mov_b32 v58, v{d+3}\nv_mov_b32 v59, v{d+4}")
        A(f"ds_write_b128 v14, v[{o1}:{o1+3}] offset:{off + CPY}")
        A(f"ds_write_b128 v14, v[56:59] offset:{off + 2*CPY}")
        A(f"ds_write_b128 v14, v[{o3}:{o3+3}] offset:{off + 3*CPY}")
        A("s_nop 1")
    A("""
  s_waitcnt vmcnt(0)
  ds_write_b128 v8, v[80:83]
  ds_write_b128 v8, v[84:87] offset:16
  """)
    A(f"""
  v_and_b32 v2, 15, v1
  v_lshrrev_b32 v3, 4, v1
  v_and_b32 v4, 3, v2
  v_sub_u32 v4, 3, v4
  v_mul_u32_u24 v4, {CPY}, v4
  v_lshrrev_b32 v5, 2, v2
  v_lshlrev_b32 v5, 3, v5
  v_lshlrev_b32 v6, 4, v3
  v_sub_u32 v6, v6, v5
  v_add_u32 v6, {2*2028 - 64*63}, v6
  v_add3_u32 v4, v4, v6, s46
  s_mul_i32 s45, s38, {U_SZ}
  v_lshlrev_b32 v5, 5, v2
  v_lshl_add_u32 v5, v3, 4, v5
  v_add_u32 v5, {U_BASE + 32}, v5
  v_add_u32 v5, s45, v5
  v_lshlrev_b32 v6, 5, v2
  v_lshl_add_u32 v6, v3, 3, v6
  s_lshl_b32 s45, s7, 12
  s_add_u32 s45, s45, {YT_OFF}
  s_waitcnt lgkmcnt(0)
  s_barrier
  s_cmp_eq_u32 s39, 1
  s_cbranch_scc1 LB_convB
  """)
    conv(A, [7, 6, 2], "A")
    A("s_branch LB_end")
    A.label("LB_convB")
    conv(A, [5, 4, 3, 1, 0], "B")
    A.label("LB_end")
    A("s_endpgm")

def conv(A, ns, tag):
    kmax = max(ns)
    ACC = {n: 16 + 4 * i for i, n in enumerate(ns)}
    for n in ns:
        for r in range(4): A(f"v_mov_b32 v{ACC[n]+r}, 0")
    BSET = [40, 72]
    APOOL = [104 + 4 * i for i in range(6)]
    loads = []
    mf = []
    seq = []
    lid = 0
    loadinfo = {}
    order = []
    apool_i = 0
    for D in range(8):
        bid = {}
        for k in range(kmax + 1):
            m = 8 * k + D
            areg = APOOL[apool_i % len(APOOL)]; apool_i += 1
            loadinfo[lid] = ('A', areg, 64 * (63 - m)); aid = lid; lid += 1
            need_first = True
            for n in sorted(ns, reverse=True):
                if k > n: continue
                j = n - k
                if j not in bid:
                    sigma = 8 * j - D
                    loadinfo[lid] = ('B', BSET[D & 1] + 4 * j, 64 * (sigma + 7)); bid[j] = lid; lid += 1
                order.append((ACC[n], aid, bid[j]))
    first = {}
    for i, (acc, a, b) in enumerate(order):
        first.setdefault(a, i); first.setdefault(b, i)
    lseq = sorted(loadinfo, key=lambda x: (first[x], x))
    ninstr = {x: (2 if loadinfo[x][0] == 'A' else 1) for x in loadinfo}
    lastuse = {}
    for i, (acc, a, b) in enumerate(order):
        lastuse[a] = i; lastuse[b] = i
    prev_same = {}
    seen = {}
    for x in lseq:
        reg = loadinfo[x][1]
        prev_same[x] = seen.get(reg)
        seen[reg] = x
    issued = []
    li = 0
    LOOK = 12
    def outstanding_after(x):
        idx = issued.index(x)
        return sum(ninstr[y] for y in issued[idx+1:])
    done_upto = -1
    for i, (acc, a, b) in enumerate(order):
        while li < len(lseq):
            x = lseq[li]
            ps = prev_same[x]
            if ps is not None and lastuse[ps] >= i: break
            out = sum(ninstr[y] for y in issued[done_upto+1:])
            if out + ninstr[x] > LOOK and first[x] > i: break
            kind, reg, off = loadinfo[x]
            if kind == 'A':
                A(f"ds_read_b64 v[{reg}:{reg+1}], v4 offset:{off}")
                A(f"ds_read_b64 v[{reg+2}:{reg+3}], v4 offset:{off+8}")
            else:
                A(f"ds_read_b128 v[{reg}:{reg+3}], v5 offset:{off}")
            issued.append(x); li += 1
        needx = max(issued.index(a), issued.index(b))
        if needx > done_upto:
            A(f"s_waitcnt lgkmcnt({outstanding_after(issued[needx])})")
            done_upto = needx
        ar = loadinfo[a][1]; br = loadinfo[b][1]
        A(f"v_mfma_f32_16x16x32_bf16 v[{acc}:{acc+3}], v[{ar}:{ar+3}], v[{br}:{br+3}], v[{acc}:{acc+3}]")
    for n in ns:
        a = ACC[n]
        A(f"v_cvt_pk_bf16_f32 v{a}, v{a}, v{a+1}")
        A(f"v_cvt_pk_bf16_f32 v{a+1}, v{a+2}, v{a+3}")
        A(f"buffer_store_dwordx2 v[{a}:{a+1}], v6, s[12:15], s45 offen offset:{512*n}")
```

```python
import sys
from asmlib import Asm
import roleB
NAME = "gated_mix__linear_kernel_hedgehog__ssm_conv_s4__prompt"

HEADER = open("cdna_kernels/" + NAME + ".s.ref").read().split("; Override launch geometry")[0]

def kd(name, vgpr, sgpr=96):
    return f""".amdhsa_kernel {name}
  .amdhsa_next_free_vgpr {vgpr}
  .amdhsa_next_free_sgpr {sgpr}
  .amdhsa_accum_offset {vgpr}
  .amdhsa_group_segment_fixed_size 0
  .amdhsa_kernarg_size 136
  .amdhsa_user_sgpr_count 2
  .amdhsa_user_sgpr_kernarg_segment_ptr 1
  .amdhsa_system_sgpr_workgroup_id_x 1
.end_amdhsa_kernel
"""

def build(parts=("A", "B", "K2")):
    out = HEADER
    out += "; @launch kernel=k1_kernel grid=(480,1,1) block=(256,1,1) lds=65536\n"
    if "K2" in parts:
        out += "; @launch kernel=k2_kernel grid=(224,1,1) block=(256,1,1) lds=65536\n"
    out += '.amdgcn_target "amdgcn-amd-amdhsa--gfx950"\n.text\n'
    A = Asm()
    A(""".globl k1_kernel
.p2align 8
.type k1_kernel,@function
k1_kernel:
  s_cmp_ge_u32 s2, 480
  s_cbranch_scc1 LK1_exit
  s_cmp_ge_u32 s2, 256
  s_cbranch_scc1 LK1_B
""")
    if "A" in parts:
        import roleA
        roleA.role_A(A)
    A("""LK1_exit:
  s_endpgm
LK1_B:
""")
    if "B" in parts:
        roleB.role_B(A)
    else:
        A("s_endpgm")
    out += A.finalize()
    if "K2" in parts:
        import k2
        A2 = Asm()
        A2(""".globl k2_kernel
.p2align 8
.type k2_kernel,@function
k2_kernel:
""")
        k2.k2(A2)
        out += A2.finalize()
    out += '.section .rodata,"a"\n.p2align 6\n' + kd("k1_kernel", 256)
    if "K2" in parts:
        out += ".p2align 6\n" + kd("k2_kernel", 208)
    return out

if __name__ == "__main__":
    parts = sys.argv[2].split(",") if len(sys.argv) > 2 else ("A", "B", "K2")
    open(sys.argv[1], "w").write(build(parts))
```

```python
import re

REG_RE = re.compile(r'^(-?)(?:abs\()?([vsa])(\d+)\)?$')
RNG_RE = re.compile(r'^(-?)([vsa])\[(\d+):(\d+)\]$')

def regs_of(tok):
    tok = tok.strip()
    m = REG_RE.match(tok)
    if m: return {(m.group(2), int(m.group(3)))}
    m = RNG_RE.match(tok)
    if m: return {(m.group(2), i) for i in range(int(m.group(3)), int(m.group(4)) + 1)}
    if tok == 'vcc': return {('s', 106), ('s', 107)}
    if tok == 'exec': return {('s', 126), ('s', 127)}
    if tok == 'm0': return {('s', 124)}
    return set()

TRANS = ('v_exp_f32', 'v_log_f32', 'v_rcp_f32', 'v_rsq_f32', 'v_sqrt_f32', 'v_sin_f32', 'v_cos_f32')

class Ins:
    __slots__ = ('text', 'mn', 'ops', 'rd', 'wr', 'kind', 'passes', 'slots', 'srcc', 'ab', 'data')
    def __init__(self, text):
        self.text = text
        t = text.split(';')[0].strip()
        parts = t.split(None, 1)
        self.mn = parts[0]
        rest = parts[1] if len(parts) > 1 else ''
        ops = []; cur = ''; depth = 0
        for ch in rest:
            if ch in '[(': depth += 1
            if ch in '])': depth -= 1
            if ch == ',' and depth == 0: ops.append(cur.strip()); cur = ''
            else: cur += ch
        if cur.strip(): ops.append(cur.strip())
        clean = []
        for o in ops:
            clean.append(o.split()[0] if o.split() else o)
        self.ops = clean
        self.rd = set(); self.wr = set(); self.kind = 'other'; self.passes = 0; self.slots = 1
        self.srcc = set(); self.ab = set(); self.data = set()
        mn = self.mn
        R = lambda i: regs_of(clean[i]) if i < len(clean) else set()
        if mn == 's_nop':
            self.kind = 'nop'; self.slots = int(clean[0], 0) + 1
        elif mn.startswith('v_mfma'):
            self.kind = 'mfma'
            self.passes = 8 if '32x32' in mn else 4
            self.wr = R(0); self.ab = R(1) | R(2); self.srcc = R(3); self.rd = self.ab | self.srcc
        elif mn.startswith('v_cmp'):
            self.kind = 'valu'; self.wr = R(0); self.rd = R(1) | R(2)
        elif mn in ('v_readfirstlane_b32', 'v_readlane_b32'):
            self.kind = 'valu'; self.wr = R(0); self.rd = R(1) | R(2)
        elif mn.startswith('v_permlane'):
            self.kind = 'valu'; self.wr = R(0) | R(1); self.rd = R(0) | R(1)
        elif mn.startswith('v_'):
            self.kind = 'valu'
            self.wr = R(0)
            for i in range(1, len(clean)): self.rd |= R(i)
            if mn.startswith('v_fmac') or mn.startswith('v_pk_fmac'): self.rd |= R(0)
            if mn.startswith('v_cndmask') and len(clean) == 3: self.rd |= regs_of('vcc')
            if mn.startswith(('v_add_co', 'v_addc_co', 'v_sub_co')): self.wr |= R(1)
        elif mn.startswith('ds_read') or mn.startswith('ds_bpermute') or mn.startswith('ds_swizzle'):
            self.kind = 'ds'; self.wr = R(0)
            for i in range(1, len(clean)): self.rd |= R(i)
        elif mn.startswith('ds_'):
            self.kind = 'ds'
            for i in range(len(clean)): self.rd |= R(i)
        elif mn.startswith(('buffer_load', 'global_load')):
            self.kind = 'vmem'
            if ' lds' in (' ' + t + ' ').replace(',', ' ') and re.search(r'\blds\b', t):
                for i in range(len(clean)): self.rd |= R(i)
                self.rd |= regs_of('m0'); self.kind = 'vmem_lds'
            else:
                self.wr = R(0)
                for i in range(1, len(clean)): self.rd |= R(i)
        elif mn.startswith(('buffer_store', 'global_store', 'buffer_atomic', 'global_atomic')):
            self.kind = 'vmem'
            for i in range(len(clean)): self.rd |= R(i)
            if 'x4' in mn or 'x3' in mn:
                self.data = R(0) if mn.startswith('buffer') else R(1)
        elif mn.startswith('s_'):
            self.kind = 'salu'
            if mn.startswith(('s_cmp', 's_cbranch', 's_branch', 's_waitcnt', 's_barrier', 's_endpgm', 's_sleep', 's_setprio')):
                for i in range(len(clean)): self.rd |= R(i)
            else:
                self.wr = R(0)
                for i in range(1, len(clean)): self.rd |= R(i)

def isv(s): return {r for r in s if r[0] in 'va'}
def iss(s): return {r for r in s if r[0] == 's'}

def need(prev, cur):
    n = 0
    pk, ck = prev.kind, cur.kind
    if pk == 'valu':
        wv = isv(prev.wr); wsg = iss(prev.wr)
        if ck == 'mfma' and wv & cur.rd: n = max(n, 2)
        if prev.mn.startswith(TRANS) and ck in ('valu', 'mfma', 'ds', 'vmem') and not cur.mn.startswith(TRANS) and wv & cur.rd: n = max(n, 1)
        if prev.mn.startswith(TRANS) and cur.mn.startswith(TRANS) and wv & cur.rd: n = max(n, 1)
        if cur.mn.startswith('v_permlane') and wv & cur.rd: n = max(n, 2)
        if cur.mn in ('v_readfirstlane_b32', 'v_readlane_b32') and wv & cur.rd: n = max(n, 1)
        if 'dpp' in cur.text and ck == 'valu' and wv & cur.rd: n = max(n, 2)
        if wsg:
            if ck == 'valu' and wsg & cur.rd: n = max(n, 2)
            if ck in ('vmem', 'vmem_lds') and wsg & cur.rd: n = max(n, 5)
            if ck == 'salu' and wsg & cur.rd: n = max(n, 1)
            if cur.mn in ('v_readlane_b32','v_writelane_b32') and wsg & cur.rd: n = max(n, 4)
    if pk == 'mfma':
        P = prev.passes
        full = {4: 8, 8: 12}[P]
        part = {4: 6, 8: 10}[P]
        if ck == 'mfma':
            if prev.wr & cur.ab: n = max(n, full)
            if prev.wr & cur.srcc:
                if not (cur.srcc == prev.wr and cur.passes == P): n = max(n, part)
            if (prev.wr & cur.wr) and not (cur.srcc == prev.wr): n = max(n, full)
        elif ck in ('valu', 'ds', 'vmem', 'vmem_lds'):
            if prev.wr & (cur.rd | cur.wr): n = max(n, full)
            if ck == 'valu' and prev.srcc & cur.wr: n = max(n, {4: 3, 8: 7}[P])
            if ck in ('ds','vmem') and (prev.srcc | prev.ab) & cur.wr: n = max(n, 0)
    if pk == 'vmem' and prev.data and ck == 'valu' and prev.data & cur.wr: n = max(n, 2)
    if pk == 'vmem' and prev.data and ck != 'valu' and prev.data & cur.wr: n = max(n, 1)
    if pk == 'salu' and ('s', 124) in prev.wr and ck == 'vmem_lds': n = max(n, 1)
    if pk == 'salu' and iss(prev.wr) & {('s',126),('s',127)} and False: pass
    return n

class Asm:
    def __init__(self):
        self.lines = []
    def __call__(self, text):
        for ln in text.split('\n'):
            s = ln.strip()
            if not s: continue
            if s.startswith(';') or s.startswith('.') or s.endswith(':'):
                self.lines.append(s)
            else:
                self.lines.append(Ins(s))
    PROFILE = False
    def stamp(self, i):
        if not self.PROFILE: return
        self(f"s_memrealtime s[62:63]\ns_waitcnt lgkmcnt(0)\ns_mov_b32 s{64+i}, s62")
    def dump_stamps(self, n, ws_srd, wgreg="s2", base=0xA00000):
        if not self.PROFILE: return
        self(f"s_lshl_b32 s62, {wgreg}, 7\ns_add_u32 s62, s62, {base}")
        self("v_lshrrev_b32 v2, 6, v0\nv_and_b32 v3, 63, v0")
        self("v_lshlrev_b32 v2, 7, v2\nv_mul_u32_u24 v2, 0x2000, v2")
        for i in range(n):
            self(f"v_mov_b32 v4, s{64+i}\ns_mov_b64 exec, 1\nbuffer_store_dword v4, v2, {ws_srd}, s62 offen offset:{4*i}\ns_mov_b64 exec, -1")
    def label(self, name): self.lines.append(name + ':')
    def comment(self, c): self.lines.append('; ' + c)
    def finalize(self):
        out = []
        hist = []
        for x in self.lines:
            if isinstance(x, str):
                out.append(x if (x.endswith(':') or x.startswith('.')) else '  ' + x)
                continue
            req = 0
            dist = 0
            for p in reversed(hist):
                if dist >= 20: break
                nn = need(p, x)
                if nn > dist: req = max(req, nn - dist)
                dist += p.slots
            while req > 0:
                k = min(req, 16)
                nop = Ins(f's_nop {k-1}')
                out.append('  ' + nop.text); hist.append(nop); req -= k
            out.append('  ' + x.text); hist.append(x)
            if len(hist) > 64: hist = hist[-40:]
        return '\n'.join(out) + '\n'
```

```python
from roleB import LOG2E, KVP_OFF, O_OFF, G_OFF, WS_SIZE
R0 = 0
R1 = 28672
KVF = 61440

X = 128
FR = 64
ACK = 32
ACV = 48
PHI = 240
IDF = 248

def softmax_feats(A, acc, out_p, out_m, tmp):
    p = acc
    e = tmp
    f = tmp + 16
    t = tmp + 32
    for j in range(8): A(f"v_cvt_pk_bf16_f32 v{e+j}, v{acc+2*j}, v{acc+2*j+1}")
    for j in range(8):
        A(f"v_lshlrev_b32 v{p+2*j}, 16, v{e+j}")
        A(f"v_and_b32 v{p+2*j+1}, 0xffff0000, v{e+j}")
    mx, mn, t2, t3 = t, t + 1, t + 2, t + 3
    A(f"v_max3_f32 v{mx}, v{p}, v{p+1}, v{p+2}")
    A(f"v_min3_f32 v{mn}, v{p}, v{p+1}, v{p+2}")
    A(f"v_max3_f32 v{t2}, v{p+3}, v{p+4}, v{p+5}")
    A(f"v_min3_f32 v{t3}, v{p+3}, v{p+4}, v{p+5}")
    for k in (6, 10):
        A(f"v_max3_f32 v{mx}, v{mx}, v{p+k}, v{p+k+1}")
        A(f"v_min3_f32 v{mn}, v{mn}, v{p+k}, v{p+k+1}")
        A(f"v_max3_f32 v{t2}, v{t2}, v{p+k+2}, v{p+k+3}")
        A(f"v_min3_f32 v{t3}, v{t3}, v{p+k+2}, v{p+k+3}")
    A(f"v_max3_f32 v{mx}, v{mx}, v{p+14}, v{p+15}")
    A(f"v_min3_f32 v{mn}, v{mn}, v{p+14}, v{p+15}")
    A(f"v_max_f32 v{mx}, v{mx}, v{t2}")
    A(f"v_min_f32 v{mn}, v{mn}, v{t3}")
    A(f"v_mov_b32 v{t2}, v{mx}")
    A(f"v_mov_b32 v{t3}, v{mn}")
    A(f"v_permlane32_swap_b32 v{mx}, v{t2}")
    A(f"v_permlane32_swap_b32 v{mn}, v{t3}")
    A(f"v_max_f32 v{mx}, v{mx}, v{t2}")
    A(f"v_min_f32 v{mn}, v{mn}, v{t3}")
    A(f"v_mul_f32 v{t+4}, s47, v{mx}")
    A(f"v_mul_f32 v{t+6}, s47, v{mn}")
    for j in range(8):
        A(f"v_pk_fma_f32 v[{e+2*j}:{e+2*j+1}], v[{p+2*j}:{p+2*j+1}], s[46:47], v[{t+4}:{t+5}] op_sel:[0,1,0] op_sel_hi:[1,1,0] neg_lo:[0,0,1] neg_hi:[0,0,1]")
        A(f"v_pk_fma_f32 v[{f+2*j}:{f+2*j+1}], v[{p+2*j}:{p+2*j+1}], s[46:47], v[{t+6}:{t+7}] op_sel:[0,1,0] op_sel_hi:[1,1,0] neg_lo:[1,0,0] neg_hi:[1,0,0]")
    for j in range(16):
        A(f"v_exp_f32 v{e+j}, v{e+j}")
        A(f"v_exp_f32 v{f+j}, v{f+j}")
    for (src, s0) in ((e, p), (f, p + 8)):
        A(f"v_pk_add_f32 v[{s0}:{s0+1}], v[{src}:{src+1}], v[{src+2}:{src+3}]")
        A(f"v_pk_add_f32 v[{s0+2}:{s0+3}], v[{src+4}:{src+5}], v[{src+6}:{src+7}]")
        A(f"v_pk_add_f32 v[{s0+4}:{s0+5}], v[{src+8}:{src+9}], v[{src+10}:{src+11}]")
        A(f"v_pk_add_f32 v[{s0+6}:{s0+7}], v[{src+12}:{src+13}], v[{src+14}:{src+15}]")
    for s0 in (p, p + 8):
        A(f"v_pk_add_f32 v[{s0}:{s0+1}], v[{s0}:{s0+1}], v[{s0+2}:{s0+3}]")
        A(f"v_add_f32 v{s0+6}, v{s0+6}, v{s0+7}")
    for s0 in (p, p + 8):
        A(f"v_pk_add_f32 v[{s0}:{s0+1}], v[{s0}:{s0+1}], v[{s0+4}:{s0+5}]")
    for s0 in (p, p + 8):
        A(f"v_add_f32 v{s0}, v{s0}, v{s0+1}")
    for s0 in (p, p + 8):
        A(f"v_fmac_f32 v{s0}, v9, v{s0+6}")
    for s0 in (p, p + 8):
        A(f"v_mov_b32 v{s0+1}, v{s0}")
    for s0 in (p, p + 8):
        A(f"v_permlane32_swap_b32 v{s0}, v{s0+1}")
    for s0 in (p, p + 8):
        A(f"v_add_f32 v{s0}, v{s0}, v{s0+1}")
    for s0 in (p, p + 8):
        A(f"v_rcp_f32 v{s0}, v{s0}")
    for s0 in (p, p + 8):
        A(f"v_mul_f32 v{s0+2}, v9, v{s0}")
    for (src, s0, out) in ((e, p, out_p), (f, p + 8, out_m)):
        for j in range(8):
            r = s0 if j < 6 else s0 + 2
            A(f"v_pk_mul_f32 v[{src+2*j}:{src+2*j+1}], v[{src+2*j}:{src+2*j+1}], v[{r}:{r+1}] op_sel:[0,0] op_sel_hi:[1,0]")
        for j in range(8):
            A(f"v_cvt_pk_bf16_f32 v{out+j}, v{src+2*j}, v{src+2*j+1}")

def role_A(A):
    A.comment("================= ROLE A =================")
    A.stamp(0)
    A("""
  s_setprio 3
  s_load_dwordx4 s[36:39], s[0:1], 0
  s_load_dwordx2 s[40:41], s[0:1], 16
  s_load_dwordx2 s[24:25], s[0:1], 104
  s_load_dwordx4 s[32:35], s[0:1], 120
  v_and_b32 v1, 63, v0
  v_lshrrev_b32 v2, 6, v0
  s_and_b32 s3, s2, 7
  s_lshr_b32 s4, s2, 3
  v_readfirstlane_b32 s6, v2
  s_lshr_b32 s5, s3, 1
  s_lshl_b32 s5, s5, 2
  s_and_b32 s42, s4, 3
  s_add_u32 s5, s5, s42
  s_and_b32 s7, s3, 1
  s_lshl_b32 s7, s7, 3
  s_lshr_b32 s42, s4, 2
  s_add_u32 s7, s7, s42
  """)
    A("""
  v_and_b32 v3, 31, v1
  v_lshrrev_b32 v4, 5, v1
  s_lshl_b32 s42, s5, 7
  s_lshl_b32 s43, s6, 5
  s_add_u32 s43, s42, s43
  v_add_u32 v5, s43, v3
  v_mul_u32_u24 v6, 896, v5
  v_lshl_add_u32 v6, v4, 4, v6
  v_lshrrev_b32 v7, 2, v1
  v_mul_u32_u24 v7, 2688, v7
  v_and_b32 v8, 3, v1
  v_lshl_add_u32 v7, v8, 4, v7
  s_mul_i32 s44, s7, 56
  s_mul_i32 s45, s6, 43008
  s_add_u32 s44, s44, s45
  v_add_u32 v7, s44, v7
  s_lshl_b32 s45, s6, 10
  s_waitcnt lgkmcnt(0)
  s_mov_b32 s8, s36
  s_mov_b32 s9, s37
  s_mov_b32 s10, 1835008
  s_mov_b32 s11, 0x00020000
  s_mov_b32 s12, s34
  s_mov_b32 s13, s35
  s_mov_b32 s14, %d
  s_mov_b32 s15, 0x00020000
  s_mov_b32 s16, s38
  s_mov_b32 s17, s39
  s_mov_b32 s18, 1204224
  s_mov_b32 s19, 0x00020000
  s_mov_b32 s20, s40
  s_mov_b32 s21, s41
  s_mov_b32 s22, 25088
  s_mov_b32 s23, 0x00020000
  """ % WS_SIZE)
    A.stamp(11)
    for c in range(7):
        for ks in range(4 * c, 4 * c + 4):
            A(f"buffer_load_dwordx4 v[{X+4*ks}:{X+4*ks+3}], v6, s[8:11], 0 offen offset:{32*ks}")
        A(f"s_add_u32 m0, s45, {R0 + 4096*c}")
        A(f"s_mov_b32 s48, {172032*c + 896}")
        A("buffer_load_dwordx4 v7, s[16:19], s48 offen lds")
        A(f"s_add_u32 m0, s45, {R1 + 4096*c}")
        A(f"s_mov_b32 s49, {172032*c + 1792}")
        A("buffer_load_dwordx4 v7, s[16:19], s49 offen lds")
    A("""
  v_cmp_lt_u32 vcc, 27, v3
  v_subrev_u32 v10, 4, v3
  s_mul_i32 s48, s7, 1568
  v_cndmask_b32 v10, v3, v10, vcc
  v_lshlrev_b32 v10, 1, v10
  v_mul_u32_u24 v11, 224, v4
  v_add3_u32 v10, v10, v11, s48
  v_cmp_eq_u32 s[52:53], 1, v4
  v_mov_b32 v11, 0x40000000
  v_cndmask_b32 v11, v10, v11, s[52:53]
  """)
    PH = 12
    for s in range(2):
        for i in range(8):
            cc = 16 * s + (i & 3) + 8 * (i >> 2)
            vo = 11 if (s == 1 and i >= 4) else 10
            A(f"buffer_load_ushort v{PH+8*s+i}, v{vo}, s[20:23], 0 offen offset:{cc*56}")
    A("""
  v_lshlrev_b32 v28, 1, v0
  global_load_ushort v29, v28, s[24:25]
  v_min_u32 v30, 191, v0
  v_lshlrev_b32 v30, 1, v30
  global_load_ushort v30, v30, s[24:25] offset:512
  """)
    NLATE = 18
    A.stamp(12)
    A("""
  v_mov_b32 v9, 1.0
  v_cndmask_b32 v9, v9, 0, s[52:53]
  s_mov_b32 s47, 0x%x
  s_mov_b32 s46, 0x%x
  v_lshlrev_b32 v31, 2, v4
  v_sub_u32 v31, v3, v31
  """ % (LOG2E, LOG2E))
    for s in range(2):
        for j in range(4):
            i0, i1 = 2 * j, 2 * j + 1
            f0 = 16 * s + (i0 & 3) + 8 * (i0 >> 2); f1 = 16 * s + (i1 & 3) + 8 * (i1 >> 2)
            r = IDF + 4 * s + j
            A(f"v_cmp_eq_u32 vcc, {f0}, v31")
            A(f"v_cmp_eq_u32 s[54:55], {f1}, v31")
            A(f"v_mov_b32 v{r}, 0")
            A(f"v_mov_b32 v2, 0x3f80")
            A(f"v_cndmask_b32 v{r}, v{r}, v2, vcc")
            A(f"v_mov_b32 v2, 0x3f800000")
            A(f"v_cndmask_b32 v{r}, v{r}, v2, s[54:55]")
    A("""
  v_and_b32 v2, 15, v1
  v_lshrrev_b32 v8, 4, v1
  v_lshrrev_b32 v31, 1, v8
  v_lshlrev_b32 v31, 3, v31
  v_lshrrev_b32 v28, 2, v2
  v_add_u32 v31, v31, v28
  v_lshlrev_b32 v31, 6, v31
  v_and_b32 v8, 1, v8
  v_lshl_add_u32 v31, v8, 5, v31
  v_and_b32 v2, 3, v2
  v_lshl_add_u32 v8, v2, 3, v31
  """)
    for i in range(16):
        A(f"v_mov_b32 v{ACK+i}, 0")
        A(f"v_mov_b32 v{ACV+i}, 0")
    def trreads(c, segs):
        b = FR + 32 * (c & 1)
        for kk in range(4):
            ks = 4 * c + kk
            for si, R in enumerate(segs):
                r = b + 16 * si + 4 * kk if len(segs) == 2 else b + 4 * kk
                A(f"ds_read_b64_tr_b16 v[{r}:{r+1}], v8 offset:{R + 1024*ks}")
                A(f"ds_read_b64_tr_b16 v[{r+2}:{r+3}], v8 offset:{R + 1024*ks + 256}")
    def vm(c): return 6 * (6 - c) + NLATE
    A.stamp(13)
    A(f"s_waitcnt vmcnt({vm(0)})")
    A.stamp(14)
    A("s_barrier")
    A.stamp(1)
    trreads(0, [R0, R1])
    for c in range(7):
        A("s_waitcnt lgkmcnt(0)")
        if c < 6:
            A(f"s_waitcnt vmcnt({vm(c+1)})")
            A("s_barrier")
            trreads(c + 1, [R0, R1])
        b = FR + 32 * (c & 1)
        for kk in range(4):
            ks = 4 * c + kk
            xr = X + 4 * ks
            A(f"v_mfma_f32_32x32x16_bf16 v[{ACK}:{ACK+15}], v[{b+4*kk}:{b+4*kk+3}], v[{xr}:{xr+3}], v[{ACK}:{ACK+15}]")
            A(f"v_mfma_f32_32x32x16_bf16 v[{ACV}:{ACV+15}], v[{xr}:{xr+3}], v[{b+16+4*kk}:{b+16+4*kk+3}], v[{ACV}:{ACV+15}]")
    A.stamp(2)
    A("s_barrier")
    for c in range(7):
        A(f"s_add_u32 m0, s45, {R0 + 4096*c}")
        A(f"s_mov_b32 s48, {172032*c}")
        A("buffer_load_dwordx4 v7, s[16:19], s48 offen lds")
    A("s_waitcnt vmcnt(7)")
    for s in range(2):
        for j in range(4):
            A(f"v_lshl_or_b32 v{PHI+4*s+j}, v{PH+8*s+2*j+1}, 16, v{PH+8*s+2*j}")
    KB = 64
    PA = 72
    for j in range(8): A(f"v_cvt_pk_bf16_f32 v{KB+j}, v{ACK+2*j}, v{ACK+2*j+1}")
    A(f"v_mfma_f32_32x32x16_bf16 v[{PA}:{PA+15}], v[{PHI}:{PHI+3}], v[{KB}:{KB+3}], 0")
    A(f"v_mfma_f32_32x32x16_bf16 v[{PA}:{PA+15}], v[{PHI+4}:{PHI+7}], v[{KB+4}:{KB+7}], v[{PA}:{PA+15}]")
    VB = 12
    A("v_cmp_eq_u32 s[54:55], 28, v3")
    A("v_mov_b32 v2, 0x3f803f80")
    for j in range(8): A(f"v_cvt_pk_bf16_f32 v{VB+j}, v{ACV+2*j}, v{ACV+2*j+1}")
    for j in range(8): A(f"v_cndmask_b32 v{VB+j}, v{VB+j}, v2, s[54:55]")
    OP, OM = 32, 40
    softmax_feats(A, PA, OP, OM, 88)
    A.stamp(3)
    TP, TM = 64, 80
    for (src, dst) in ((OP, TP), (OM, TM)):
        A(f"v_mfma_f32_32x32x16_bf16 v[{dst}:{dst+15}], v[{src}:{src+3}], v[{IDF}:{IDF+3}], 0")
        A(f"v_mfma_f32_32x32x16_bf16 v[{dst}:{dst+15}], v[{src+4}:{src+7}], v[{IDF+4}:{IDF+7}], v[{dst}:{dst+15}]")
    TPp, TMp = 96, 104
    for (src, dst) in ((TP, TPp), (TM, TMp)):
        for j in range(8): A(f"v_cvt_pk_bf16_f32 v{dst+j}, v{src+2*j}, v{src+2*j+1}")
    for (src, dst) in ((TPp, TP), (TMp, TM)):
        A(f"v_mfma_f32_32x32x16_bf16 v[{dst}:{dst+15}], v[{src}:{src+3}], v[{VB}:{VB+3}], 0")
        A(f"v_mfma_f32_32x32x16_bf16 v[{dst}:{dst+15}], v[{src+4}:{src+7}], v[{VB+4}:{VB+7}], v[{dst}:{dst+15}]")
    A(f"""
  v_lshlrev_b32 v2, 4, v1
  s_lshl_b32 s48, s6, 13
  s_add_u32 s48, s48, {R1}
  v_add_u32 v10, s48, v2
  s_lshl_b32 s48, s6, 11
  s_add_u32 s48, s48, {R1}
  v_add_u32 v11, s48, v2
  """)
    for q in range(8): A(f"ds_write_b128 v10, v[{64+4*q}:{64+4*q+3}] offset:{1024*q}")
    A("s_waitcnt lgkmcnt(0)")
    A("s_barrier")
    for ww in range(4):
        for qq in range(2):
            r = 64 + 8 * ww + 4 * qq
            A(f"ds_read_b128 v[{r}:{r+3}], v11 offset:{8192*ww + 1024*qq}")
    A("s_waitcnt lgkmcnt(0)")
    for i in range(0, 8, 2):
        A(f"v_pk_add_f32 v[{64+i}:{65+i}], v[{64+i}:{65+i}], v[{72+i}:{73+i}]")
        A(f"v_pk_add_f32 v[{80+i}:{81+i}], v[{80+i}:{81+i}], v[{88+i}:{89+i}]")
    for i in range(0, 8, 2):
        A(f"v_pk_add_f32 v[{64+i}:{65+i}], v[{64+i}:{65+i}], v[{80+i}:{81+i}]")
    A.stamp(4)
    A(f"""
  s_lshl_b32 s48, s6, 11
  v_add_u32 v26, s48, v2
  s_lshl_b32 s49, s7, 17
  s_lshl_b32 s50, s5, 13
  s_add_u32 s50, s50, s49
  s_add_u32 s50, s50, {KVP_OFF}
  s_add_u32 s49, s49, {KVP_OFF}
  buffer_store_dwordx4 v[64:67], v26, s[12:15], s50 offen sc1
  buffer_store_dwordx4 v[68:71], v26, s[12:15], s50 offen offset:1024 sc1
  s_waitcnt vmcnt(0)
  s_barrier
  s_lshl_b32 s51, s7, 2
  s_add_u32 s51, s51, 64
  v_mov_b32 v27, s51
  s_cmp_lg_u32 s6, 0
  s_cbranch_scc1 LA_nopub
  v_mov_b32 v2, 1
  s_mov_b64 s[56:57], exec
  s_mov_b64 exec, 1
  global_atomic_add v27, v2, s[32:33]
  s_mov_b64 exec, s[56:57]
LA_nopub:
  """)
    A.stamp(5)
    A(f"""
  v_lshlrev_b32 v2, 6, v0
  ds_write_b16 v2, v29 offset:{R0 + 58}
  v_cmp_gt_u32 vcc, 192, v0
  s_and_saveexec_b64 s[56:57], vcc
  ds_write_b16 v2, v30 offset:{R0 + 58 + 16384}
  s_mov_b64 exec, s[56:57]
  s_waitcnt lgkmcnt(0)
  s_barrier
  """)
    AQ = 48
    for i in range(16): A(f"v_mov_b32 v{AQ+i}, 0")
    trreads(0, [R0])
    for c in range(7):
        A("s_waitcnt lgkmcnt(0)")
        if c < 6: trreads(c + 1, [R0])
        b = FR + 32 * (c & 1)
        for kk in range(4):
            ks = 4 * c + kk
            xr = X + 4 * ks
            A(f"v_mfma_f32_32x32x16_bf16 v[{AQ}:{AQ+15}], v[{b+4*kk}:{b+4*kk+3}], v[{xr}:{xr+3}], v[{AQ}:{AQ+15}]")
    A.stamp(6)
    for j in range(8): A(f"v_cvt_pk_bf16_f32 v{KB+j}, v{AQ+2*j}, v{AQ+2*j+1}")
    A(f"v_mfma_f32_32x32x16_bf16 v[{PA}:{PA+15}], v[{PHI}:{PHI+3}], v[{KB}:{KB+3}], 0")
    A(f"v_mfma_f32_32x32x16_bf16 v[{PA}:{PA+15}], v[{PHI+4}:{PHI+7}], v[{KB+4}:{KB+7}], v[{PA}:{PA+15}]")
    A(f"""
  v_and_b32 v10, 0xffff0000, v{KB+6}
  v_mul_f32 v10, s47, v10
  v_sub_f32 v10, 0, v10
  v_exp_f32 v10, v10
  v_add_f32 v10, 1.0, v10
  v_rcp_f32 v10, v10
  v_cvt_pk_bf16_f32 v10, v10, v10
  v_lshlrev_b32 v10, 16, v10
  v_lshlrev_b32 v11, 2, v5
  s_cmp_lg_u32 s7, 0
  s_cbranch_scc1 LA_nog
  s_mov_b64 s[56:57], exec
  s_mov_b64 exec, s[52:53]
  s_mov_b32 s48, {G_OFF}
  buffer_store_dword v10, v11, s[12:15], s48 offen
  s_mov_b64 exec, s[56:57]
LA_nog:
  """)
    softmax_feats(A, PA, OP, OM, 88)
    A.stamp(7)
    A("""
  s_cmp_lg_u32 s6, 0
  s_cbranch_scc1 LA_nopoll
  s_mov_b32 s51, 0
LA_poll:
  global_load_dword v2, v27, s[32:33] sc1
  s_waitcnt vmcnt(0)
  v_readfirstlane_b32 s48, v2
  s_cmp_ge_u32 s48, 16
  s_cbranch_scc1 LA_nopoll
  s_sleep 1
  s_add_u32 s51, s51, 1
  s_cmp_lt_u32 s51, 0x40000
  s_cbranch_scc1 LA_poll
LA_nopoll:
  s_barrier
  """)
    A.stamp(8)
    PL = 64
    for pp in range(16):
        A(f"s_add_u32 s48, s49, {8192*pp}")
        A(f"buffer_load_dwordx4 v[{PL+8*pp}:{PL+8*pp+3}], v26, s[12:15], s48 offen sc1")
        A(f"buffer_load_dwordx4 v[{PL+8*pp+4}:{PL+8*pp+7}], v26, s[12:15], s48 offen offset:1024 sc1")
    for step, wait in ((0, 16), (1, 0)):
        A(f"s_waitcnt vmcnt({wait})")
        base = PL + 64 * step
        for lvl in (8, 16, 32):
            for b0 in range(base, base + 64, 2 * lvl):
                for i in range(0, 8, 2):
                    A(f"v_pk_add_f32 v[{b0+i}:{b0+i+1}], v[{b0+i}:{b0+i+1}], v[{b0+lvl+i}:{b0+lvl+i+1}]")
    for i in range(0, 8, 2):
        A(f"v_pk_add_f32 v[{PL+i}:{PL+i+1}], v[{PL+i}:{PL+i+1}], v[{PL+64+i}:{PL+64+i+1}]")
    A.stamp(9)
    for j in range(4): A(f"v_cvt_pk_bf16_f32 v{72+j}, v{PL+2*j}, v{PL+2*j+1}")
    A(f"""
  v_lshlrev_b32 v2, 4, v1
  s_lshl_b32 s48, s6, 10
  s_add_u32 s48, s48, {KVF}
  v_add_u32 v10, s48, v2
  ds_write_b128 v10, v[72:75]
  s_waitcnt lgkmcnt(0)
  s_barrier
  """)
    for fi in range(4): A(f"ds_read_b128 v[{80+4*fi}:{80+4*fi+3}], v2 offset:{KVF + 1024*fi}")
    NUM = 96
    A("s_waitcnt lgkmcnt(0)")
    srcs = [OP, OP + 4, OM, OM + 4]
    for fi in range(4):
        c = "0" if fi == 0 else f"v[{NUM}:{NUM+15}]"
        A(f"v_mfma_f32_32x32x16_bf16 v[{NUM}:{NUM+15}], v[{80+4*fi}:{80+4*fi+3}], v[{srcs[fi]}:{srcs[fi]+3}], {c}")
    NB = 112
    for j in range(8): A(f"v_cvt_pk_bf16_f32 v{NB+j}, v{NUM+2*j}, v{NUM+2*j+1}")
    A(f"""
  v_lshlrev_b32 v10, 16, v{NB+6}
  v_mov_b32 v11, v10
  v_permlane32_swap_b32 v11, v10
  v_add_f32 v10, 0x358637bd, v10
  v_cvt_pk_bf16_f32 v10, v10, v10
  v_lshlrev_b32 v10, 16, v10
  v_rcp_f32 v10, v10
  """)
    for j in range(8):
        A(f"v_lshlrev_b32 v{NUM+2*j}, 16, v{NB+j}")
        A(f"v_and_b32 v{NUM+2*j+1}, 0xffff0000, v{NB+j}")
    for j in range(8):
        A(f"v_pk_mul_f32 v[{NUM+2*j}:{NUM+2*j+1}], v[{NUM+2*j}:{NUM+2*j+1}], v[10:11] op_sel:[0,0] op_sel_hi:[1,0]")
    for j in range(8): A(f"v_cvt_pk_bf16_f32 v{NB+j}, v{NUM+2*j}, v{NUM+2*j+1}")
    A(f"""
  v_mul_u32_u24 v2, 896, v5
  v_lshl_add_u32 v2, v4, 3, v2
  s_mul_i32 s48, s7, 56
  s_add_u32 s48, s48, {O_OFF}
  v_mov_b32 v11, 0x40000000
  v_cndmask_b32 v11, v2, v11, s[52:53]
  """)
    for q in range(4):
        vo = 11 if q == 3 else 2
        A(f"buffer_store_dwordx2 v[{NB+2*q}:{NB+2*q+1}], v{vo}, s[12:15], s48 offen offset:{16*q}")
    A.stamp(10)
    A.dump_stamps(15, "s[12:15]")
    A("s_endpgm")
```

```python
from roleB import LOG2E, KVP_OFF, O_OFF, G_OFF, WS_SIZE
from roleA import softmax_feats
WK = 0
WV = 28672
XR = 57344
WQ = XR
RED = XR + 28672
KVF = 151552

X = 128
FR = 64
ACK = 32
ACV = 48
PHI = 240
IDF = 248

def mix(A, mf, others):
    n = len(mf); k = 0
    for i, m in enumerate(mf):
        A(m)
        tgt = (len(others) * (i + 1) + n - 1) // n
        while k < min(tgt, len(others)):
            A(others[k]); k += 1

class VM:
    def __init__(self): self.q = []
    def add(self, tag): self.q.append(tag)
    def wait(self, tag):
        idx = max(i for i, t in enumerate(self.q) if t == tag)
        n = len(self.q) - 1 - idx
        self.q = self.q[idx+1:]
        return n

def role_A(A, NB=128):
    A.comment("================= ROLE A (v2) =================")
    A.stamp(0)
    A("""
  s_load_dwordx4 s[36:39], s[0:1], 0
  s_load_dwordx2 s[40:41], s[0:1], 16
  s_load_dwordx2 s[24:25], s[0:1], 104
  s_load_dwordx4 s[32:35], s[0:1], 120
  v_and_b32 v1, 63, v0
  v_lshrrev_b32 v2, 6, v0
  s_and_b32 s3, s2, 7
  s_lshr_b32 s4, s2, 3
  v_readfirstlane_b32 s6, v2
  s_lshr_b32 s5, s3, 1
  s_lshl_b32 s5, s5, 1
  s_and_b32 s42, s4, 1
  s_add_u32 s5, s5, s42
  s_and_b32 s7, s3, 1
  s_lshl_b32 s7, s7, 3
  s_lshr_b32 s42, s4, 1
  s_add_u32 s7, s7, s42
  """)
    A("""
  v_and_b32 v3, 31, v1
  v_lshrrev_b32 v4, 5, v1
  s_lshl_b32 s42, s5, 8
  s_lshl_b32 s43, s6, 5
  s_add_u32 s43, s42, s43
  v_add_u32 v5, s43, v3
  v_lshrrev_b32 v7, 3, v1
  v_and_b32 v8, 7, v1
  v_xor_b32 v8, v8, v7
  v_mul_u32_u24 v6, 896, v7
  v_lshl_add_u32 v6, v8, 4, v6
  s_mul_i32 s44, s43, 896
  v_lshrrev_b32 v7, 2, v1
  v_mul_u32_u24 v7, 2688, v7
  v_and_b32 v8, 3, v1
  v_lshl_add_u32 v7, v8, 4, v7
  s_mul_i32 s45, s7, 56
  v_add_u32 v7, s45, v7
  s_and_b32 s46, s6, 3
  s_lshr_b32 s47, s6, 2
  s_mul_i32 s48, s46, 43008
  s_mul_i32 s49, s47, 896
  s_add_u32 s48, s48, s49
  s_add_u32 s48, s48, 896
  s_mul_i32 s49, s47, 28672
  s_lshl_b32 s50, s46, 10
  s_add_u32 s49, s49, s50
  s_lshl_b32 s50, s6, 12
  s_waitcnt lgkmcnt(0)
  s_mov_b32 s8, s36
  s_mov_b32 s9, s37
  s_mov_b32 s10, 1835008
  s_mov_b32 s11, 0x00020000
  s_mov_b32 s12, s34
  s_mov_b32 s13, s35
  s_mov_b32 s14, %d
  s_mov_b32 s15, 0x00020000
  s_mov_b32 s16, s38
  s_mov_b32 s17, s39
  s_mov_b32 s18, 1204224
  s_mov_b32 s19, 0x00020000
  s_mov_b32 s20, s40
  s_mov_b32 s21, s41
  s_mov_b32 s22, 25088
  s_mov_b32 s23, 0x00020000
  """ % WS_SIZE)
    A.stamp(11)
    vm = VM()
    A("""
  s_lshr_b32 s51, s4, 1
  s_and_b32 s54, s4, 1
  s_mul_i32 s54, s54, 3
  s_add_u32 s51, s51, s54
  s_sub_u32 s54, s51, 7
  s_cmp_ge_u32 s51, 7
  s_cselect_b32 s51, s54, s51
  s_sub_u32 s54, s51, 7
  s_cmp_ge_u32 s51, 7
  s_cselect_b32 s88, s54, s51
  """)
    for j in range(1, 7):
        A(f"s_add_u32 s{88+j}, s{88+j-1}, 1\ns_cmp_ge_u32 s{88+j}, 7\ns_cselect_b32 s{88+j}, 0, s{88+j}")
    def dma_x(c):
        slot = XR + 32768 * (c % 3)
        for j in range(4):
            A(f"s_add_u32 m0, s50, {slot + 1024*j}")
            A(f"s_lshl_b32 s51, s{88+c}, 7")
            A(f"s_add_u32 s51, s51, s44")
            A(f"s_add_u32 s51, s51, {7168*j}")
            A("buffer_load_dwordx4 v6, s[8:11], s51 offen lds")
            vm.add(f"x{c}")
    def dma_w(c):
        A(f"s_lshl_b32 s51, s{88+c}, 12")
        A(f"s_add_u32 m0, s49, s51")
        A(f"s_mul_i32 s51, s{88+c}, 172032")
        A(f"s_add_u32 s51, s51, s48")
        A("buffer_load_dwordx4 v7, s[16:19], s51 offen lds")
        vm.add(f"w{c}")
    for c in range(3):
        dma_w(c); dma_x(c)
        if c < 2: A("s_barrier")
    A("v_cmp_eq_u32 s[52:53], 1, v4")
    PH = 12
    def small_loads():
        A("""
  v_cmp_lt_u32 vcc, 27, v3
  v_subrev_u32 v10, 4, v3
  s_mul_i32 s51, s7, 1568
  v_cndmask_b32 v10, v3, v10, vcc
  v_lshlrev_b32 v10, 1, v10
  v_mul_u32_u24 v11, 224, v4
  v_add3_u32 v10, v10, v11, s51
  v_cmp_eq_u32 s[52:53], 1, v4
  v_mov_b32 v11, 0x40000000
  v_cndmask_b32 v11, v10, v11, s[52:53]
  """)
        for s in range(2):
            for i in range(8):
                cc = 16 * s + (i & 3) + 8 * (i >> 2)
                vo = 11 if (s == 1 and i >= 4) else 10
                A(f"buffer_load_ushort v{PH+8*s+i}, v{vo}, s[20:23], 0 offen offset:{cc*56}")
                vm.add("phi")
        A("""
  v_min_u32 v30, 447, v0
  v_lshlrev_b32 v30, 1, v30
  global_load_ushort v29, v30, s[24:25]
  """)
        vm.add("gw")
    A.stamp(12)
    A("""
  v_mov_b32 v9, 1.0
  v_cndmask_b32 v9, v9, 0, s[52:53]
  s_mov_b32 s47, 0x%x
  s_mov_b32 s46, 0x%x
  v_lshlrev_b32 v31, 2, v4
  v_sub_u32 v31, v3, v31
  """ % (LOG2E, LOG2E))
    for s in range(2):
        for j in range(4):
            i0, i1 = 2 * j, 2 * j + 1
            f0 = 16 * s + (i0 & 3) + 8 * (i0 >> 2); f1 = 16 * s + (i1 & 3) + 8 * (i1 >> 2)
            r = IDF + 4 * s + j
            A(f"v_cmp_eq_u32 vcc, {f0}, v31")
            A(f"v_cmp_eq_u32 s[54:55], {f1}, v31")
            A(f"v_mov_b32 v2, 0x3f80")
            A(f"v_mov_b32 v30, 0x3f800000")
            A(f"v_cndmask_b32 v{r}, 0, v2, vcc")
            A(f"v_cndmask_b32 v{r}, v{r}, v30, s[54:55]")
    A("""
  v_and_b32 v2, 15, v1
  v_lshrrev_b32 v8, 4, v1
  v_lshrrev_b32 v31, 1, v8
  v_lshlrev_b32 v31, 3, v31
  v_lshrrev_b32 v28, 2, v2
  v_add_u32 v31, v31, v28
  v_lshlrev_b32 v31, 6, v31
  v_and_b32 v8, 1, v8
  v_lshl_add_u32 v31, v8, 5, v31
  v_and_b32 v2, 3, v2
  v_lshl_add_u32 v8, v2, 3, v31
  v_and_b32 v2, 7, v3
  v_lshlrev_b32 v28, 7, v3
  v_add_u32 v28, s50, v28
  """)
    XA = [240, 241, 242, 243]
    for kk in range(4):
        A(f"v_xor_b32 v{XA[kk]}, {2*kk}, v4" if False else f"v_add_u32 v{XA[kk]}, {2*kk}, v4")
        A(f"v_xor_b32 v{XA[kk]}, v{XA[kk]}, v2")
        A(f"v_lshl_add_u32 v{XA[kk]}, v{XA[kk]}, 4, v28")
        A(f"v_add_u32 v{XA[kk]}, {XR}, v{XA[kk]}")
    for i in range(16):
        A(f"v_mov_b32 v{ACK+i}, 0")
        A(f"v_mov_b32 v{ACV+i}, 0")
    def reads(c):
        b = FR + 32 * (c & 1)
        slot = 32768 * (c % 3)
        for kk in range(4):
            ks = 4 * c + kk
            A(f"ds_read_b128 v[{X+4*ks}:{X+4*ks+3}], v{XA[kk]} offset:{slot}" if slot < 65536 else "")
            for si, R in enumerate((WK, WV)):
                r = b + 16 * si + 4 * kk
                A(f"ds_read_b64_tr_b16 v[{r}:{r+1}], v8 offset:{R + 1024*ks}")
                A(f"ds_read_b64_tr_b16 v[{r+2}:{r+3}], v8 offset:{R + 1024*ks + 256}")
    def reads2(c):
        b = FR + 32 * (c & 1)
        sl = c % 3
        if sl == 2:
            for kk in range(4): A(f"v_add_u32 v{XA[kk]}, 0x8000, v{XA[kk]}")
        off = 32768 * sl if sl < 2 else 32768
        A(f"s_lshl_b32 s51, s{88+c}, 12")
        A(f"v_add_u32 v28, s51, v8")
        for kk in range(4):
            ks = 4 * c + kk
            A(f"ds_read_b128 v[{X+4*ks}:{X+4*ks+3}], v{XA[kk]} offset:{off}")
            for si, R in enumerate((WK, WV)):
                r = b + 16 * si + 4 * kk
                A(f"ds_read_b64_tr_b16 v[{r}:{r+1}], v28 offset:{R + 1024*kk}")
                A(f"ds_read_b64_tr_b16 v[{r+2}:{r+3}], v28 offset:{R + 1024*kk + 256}")
        if sl == 2:
            for kk in range(4): A(f"v_subrev_u32 v{XA[kk]}, 0x8000, v{XA[kk]}")
    def reads_list(c):
        L = []
        b = FR + 32 * (c & 1)
        sl = c % 3
        if sl == 2:
            for kk in range(4): L.append(f"v_add_u32 v{XA[kk]}, 0x8000, v{XA[kk]}")
        off = 32768 * sl if sl < 2 else 32768
        L.append(f"s_lshl_b32 s51, s{88+c}, 12")
        L.append(f"v_add_u32 v28, s51, v8")
        for kk in range(4):
            ks = 4 * c + kk
            L.append(f"ds_read_b128 v[{X+4*ks}:{X+4*ks+3}], v{XA[kk]} offset:{off}")
            for si, R in enumerate((WK, WV)):
                r = b + 16 * si + 4 * kk
                L.append(f"ds_read_b64_tr_b16 v[{r}:{r+1}], v28 offset:{R + 1024*kk}")
                L.append(f"ds_read_b64_tr_b16 v[{r+2}:{r+3}], v28 offset:{R + 1024*kk + 256}")
        if sl == 2:
            for kk in range(4): L.append(f"v_subrev_u32 v{XA[kk]}, 0x8000, v{XA[kk]}")
        return L
    A.stamp(13)
    n = vm.wait("x0"); A(f"s_waitcnt vmcnt({n})")
    A.stamp(14)
    A("s_barrier")
    A.stamp(1)
    for x in reads_list(0): A(x)
    for c in range(7):
        A("s_waitcnt lgkmcnt(0)")
        if c + 3 < 7:
            dma_w(c + 3); dma_x(c + 3)
        if c == 3: small_loads()
        rl = []
        if c < 6:
            n = vm.wait(f"x{c+1}")
            A(f"s_waitcnt vmcnt({n})")
            A("s_barrier")
            rl = reads_list(c + 1)
        b = FR + 32 * (c & 1)
        mf = []
        for kk in range(4):
            ks = 4 * c + kk
            xr = X + 4 * ks
            mf.append(f"v_mfma_f32_32x32x16_bf16 v[{ACK}:{ACK+15}], v[{b+4*kk}:{b+4*kk+3}], v[{xr}:{xr+3}], v[{ACK}:{ACK+15}]")
            mf.append(f"v_mfma_f32_32x32x16_bf16 v[{ACV}:{ACV+15}], v[{xr}:{xr+3}], v[{b+16+4*kk}:{b+16+4*kk+3}], v[{ACV}:{ACV+15}]")
        import os
        if os.environ.get("NOMFMA"): mf = []
        if os.environ.get("NOREADS"): rl = []
        if mf: mix(A, mf, rl)
        else:
            for x in rl: A(x)
    A.stamp(2)
    A("s_barrier")
    A(f"""
  s_mul_i32 s48, s6, 43008
  s_lshl_b32 s49, s6, 10
  """)
    for i in range(4):
        if i == 3: A("s_cmp_ge_u32 s6, 4\ns_cbranch_scc1 LA_skipq")
        A(f"s_add_u32 m0, s49, {WQ + 8192*i}")
        A(f"s_add_u32 s51, s48, {344064*i}")
        A("buffer_load_dwordx4 v7, s[16:19], s51 offen lds")
    A.label("LA_skipq")
    A("s_waitcnt vmcnt(3)")
    for s in range(2):
        for j in range(4):
            A(f"v_lshl_or_b32 v{PHI+4*s+j}, v{PH+8*s+2*j+1}, 16, v{PH+8*s+2*j}")
    KB = 64; PA = 72
    for j in range(8): A(f"v_cvt_pk_bf16_f32 v{KB+j}, v{ACK+2*j}, v{ACK+2*j+1}")
    A(f"v_mfma_f32_32x32x16_bf16 v[{PA}:{PA+15}], v[{PHI}:{PHI+3}], v[{KB}:{KB+3}], 0")
    A(f"v_mfma_f32_32x32x16_bf16 v[{PA}:{PA+15}], v[{PHI+4}:{PHI+7}], v[{KB+4}:{KB+7}], v[{PA}:{PA+15}]")
    VB = 12
    A("v_cmp_eq_u32 s[54:55], 28, v3")
    A("v_mov_b32 v2, 0x3f803f80")
    for j in range(8): A(f"v_cvt_pk_bf16_f32 v{VB+j}, v{ACV+2*j}, v{ACV+2*j+1}")
    for j in range(8): A(f"v_cndmask_b32 v{VB+j}, v{VB+j}, v2, s[54:55]")
    OP, OM = 32, 40
    softmax_feats(A, PA, OP, OM, 88)
    A.stamp(3)
    TP, TM = 64, 80
    for (src, dst) in ((OP, TP), (OM, TM)):
        A(f"v_mfma_f32_32x32x16_bf16 v[{dst}:{dst+15}], v[{src}:{src+3}], v[{IDF}:{IDF+3}], 0")
        A(f"v_mfma_f32_32x32x16_bf16 v[{dst}:{dst+15}], v[{src+4}:{src+7}], v[{IDF+4}:{IDF+7}], v[{dst}:{dst+15}]")
    TPp, TMp = 96, 104
    for (src, dst) in ((TP, TPp), (TM, TMp)):
        for j in range(8): A(f"v_cvt_pk_bf16_f32 v{dst+j}, v{src+2*j}, v{src+2*j+1}")
    for (src, dst) in ((TPp, TP), (TMp, TM)):
        A(f"v_mfma_f32_32x32x16_bf16 v[{dst}:{dst+15}], v[{src}:{src+3}], v[{VB}:{VB+3}], 0")
        A(f"v_mfma_f32_32x32x16_bf16 v[{dst}:{dst+15}], v[{src+4}:{src+7}], v[{VB+4}:{VB+7}], v[{dst}:{dst+15}]")
    A(f"""
  v_lshlrev_b32 v2, 4, v1
  s_lshl_b32 s48, s6, 13
  s_add_u32 s48, s48, {RED}
  v_add_u32 v10, s48, v2
  s_lshl_b32 s48, s6, 10
  v_add_u32 v26, s48, v2
  v_add_u32 v11, {RED}, v26
  """)
    for q in range(8): A(f"ds_write_b128 v10, v[{64+4*q}:{64+4*q+3}] offset:{1024*q}")
    A("s_waitcnt lgkmcnt(0)")
    A("s_barrier")
    for ww in range(8):
        r = 64 + 4 * ww
        A(f"ds_read_b128 v[{r}:{r+3}], v11 offset:{8192*ww}")
    A("s_waitcnt lgkmcnt(0)")
    for lvl in (4, 8, 16):
        for b0 in range(64, 96, 2 * lvl):
            for i in (0, 2):
                A(f"v_pk_add_f32 v[{b0+i}:{b0+i+1}], v[{b0+i}:{b0+i+1}], v[{b0+lvl+i}:{b0+lvl+i+1}]")
    A.stamp(4)
    A(f"""
  s_lshl_b32 s49, s7, 16
  s_lshl_b32 s48, s5, 13
  s_add_u32 s48, s48, s49
  s_add_u32 s48, s48, {KVP_OFF}
  s_add_u32 s49, s49, {KVP_OFF}
  buffer_store_dwordx4 v[64:67], v26, s[12:15], s48 offen sc1
  s_waitcnt vmcnt(0)
  s_barrier
  s_lshl_b32 s51, s7, 2
  v_mov_b32 v27, s51
  s_cmp_lg_u32 s6, 0
  s_cbranch_scc1 LA_nopub
  v_mov_b32 v2, 1
  s_mov_b64 s[56:57], exec
  s_mov_b64 exec, 1
  global_atomic_add v27, v2, s[32:33]
  s_mov_b64 exec, s[56:57]
LA_nopub:
  """)
    A.stamp(5)
    A(f"""
  v_lshlrev_b32 v2, 6, v0
  v_cmp_gt_u32 vcc, 448, v0
  s_and_saveexec_b64 s[56:57], vcc
  ds_write_b16 v2, v29 offset:{WQ + 58}
  s_mov_b64 exec, s[56:57]
  s_waitcnt lgkmcnt(0)
  s_barrier
  """)
    AQ = 48
    for i in range(16): A(f"v_mov_b32 v{AQ+i}, 0")
    A(f"v_add_u32 v8, {WQ}, v8")
    def trq(c):
        L = []
        b = FR + 32 * (c & 1)
        L.append(f"s_lshl_b32 s51, s{88+c}, 12")
        L.append(f"v_add_u32 v28, s51, v8")
        for kk in range(4):
            r = b + 4 * kk
            L.append(f"ds_read_b64_tr_b16 v[{r}:{r+1}], v28 offset:{1024*kk}")
            L.append(f"ds_read_b64_tr_b16 v[{r+2}:{r+3}], v28 offset:{1024*kk + 256}")
        return L
    for x in trq(0): A(x)
    for c in range(7):
        A("s_waitcnt lgkmcnt(0)")
        rl = trq(c + 1) if c < 6 else []
        b = FR + 32 * (c & 1)
        mf = []
        for kk in range(4):
            ks = 4 * c + kk
            xr = X + 4 * ks
            mf.append(f"v_mfma_f32_32x32x16_bf16 v[{AQ}:{AQ+15}], v[{b+4*kk}:{b+4*kk+3}], v[{xr}:{xr+3}], v[{AQ}:{AQ+15}]")
        mix(A, mf, rl)
    A.stamp(6)
    for j in range(8): A(f"v_cvt_pk_bf16_f32 v{KB+j}, v{AQ+2*j}, v{AQ+2*j+1}")
    A(f"v_mfma_f32_32x32x16_bf16 v[{PA}:{PA+15}], v[{PHI}:{PHI+3}], v[{KB}:{KB+3}], 0")
    A(f"v_mfma_f32_32x32x16_bf16 v[{PA}:{PA+15}], v[{PHI+4}:{PHI+7}], v[{KB+4}:{KB+7}], v[{PA}:{PA+15}]")
    A(f"""
  v_and_b32 v10, 0xffff0000, v{KB+6}
  v_mul_f32 v10, s47, v10
  v_sub_f32 v10, 0, v10
  v_exp_f32 v10, v10
  v_add_f32 v10, 1.0, v10
  v_rcp_f32 v10, v10
  v_cvt_pk_bf16_f32 v10, v10, v10
  v_lshlrev_b32 v10, 16, v10
  v_lshlrev_b32 v11, 2, v5
  s_cmp_lg_u32 s7, 0
  s_cbranch_scc1 LA_nog
  s_mov_b64 s[56:57], exec
  s_mov_b64 exec, s[52:53]
  s_mov_b32 s48, {G_OFF}
  buffer_store_dword v10, v11, s[12:15], s48 offen
  s_mov_b64 exec, s[56:57]
LA_nog:
  """)
    softmax_feats(A, PA, OP, OM, 88)
    A.stamp(7)
    A("""
  s_cmp_lg_u32 s6, 0
  s_cbranch_scc1 LA_nopoll
  s_mov_b32 s51, 0
LA_poll:
  global_load_dword v2, v27, s[32:33] sc1
  s_waitcnt vmcnt(0)
  v_readfirstlane_b32 s48, v2
  s_cmp_ge_u32 s48, 8
  s_cbranch_scc1 LA_nopoll
  s_sleep 1
  s_add_u32 s51, s51, 1
  s_cmp_lt_u32 s51, 0x40000
  s_cbranch_scc1 LA_poll
LA_nopoll:
  s_barrier
  """)
    A.stamp(8)
    PL = 64
    for pp in range(8):
        A(f"s_add_u32 s48, s49, {8192*pp}")
        A(f"buffer_load_dwordx4 v[{PL+4*pp}:{PL+4*pp+3}], v26, s[12:15], s48 offen sc1")
    A("s_waitcnt vmcnt(0)")
    for lvl in (4, 8, 16):
        for b0 in range(64, 96, 2 * lvl):
            for i in (0, 2):
                A(f"v_pk_add_f32 v[{b0+i}:{b0+i+1}], v[{b0+i}:{b0+i+1}], v[{b0+lvl+i}:{b0+lvl+i+1}]")
    A.stamp(9)
    A(f"""
  v_cvt_pk_bf16_f32 v72, v64, v65
  v_cvt_pk_bf16_f32 v73, v66, v67
  v_lshlrev_b32 v2, 4, v1
  s_lshr_b32 s48, s6, 1
  s_lshl_b32 s48, s48, 10
  s_and_b32 s51, s6, 1
  s_lshl_b32 s51, s51, 3
  s_add_u32 s48, s48, s51
  s_add_u32 s48, s48, {KVF}
  v_add_u32 v10, s48, v2
  ds_write_b64 v10, v[72:73]
  v_add_u32 v2, {KVF}, v2
  s_waitcnt lgkmcnt(0)
  s_barrier
  """)
    for fi in range(4): A(f"ds_read_b128 v[{80+4*fi}:{80+4*fi+3}], v2 offset:{1024*fi}")
    NUM = 96
    A("s_waitcnt lgkmcnt(0)")
    srcs = [OP, OP + 4, OM, OM + 4]
    for fi in range(4):
        c = "0" if fi == 0 else f"v[{NUM}:{NUM+15}]"
        A(f"v_mfma_f32_32x32x16_bf16 v[{NUM}:{NUM+15}], v[{80+4*fi}:{80+4*fi+3}], v[{srcs[fi]}:{srcs[fi]+3}], {c}")
    NBr = 112
    for j in range(8): A(f"v_cvt_pk_bf16_f32 v{NBr+j}, v{NUM+2*j}, v{NUM+2*j+1}")
    A(f"""
  v_lshlrev_b32 v10, 16, v{NBr+6}
  v_mov_b32 v11, v10
  v_permlane32_swap_b32 v11, v10
  v_add_f32 v10, 0x358637bd, v10
  v_cvt_pk_bf16_f32 v10, v10, v10
  v_lshlrev_b32 v10, 16, v10
  v_rcp_f32 v10, v10
  """)
    for j in range(8):
        A(f"v_lshlrev_b32 v{NUM+2*j}, 16, v{NBr+j}")
        A(f"v_and_b32 v{NUM+2*j+1}, 0xffff0000, v{NBr+j}")
    for j in range(8):
        A(f"v_pk_mul_f32 v[{NUM+2*j}:{NUM+2*j+1}], v[{NUM+2*j}:{NUM+2*j+1}], v[10:11] op_sel:[0,0] op_sel_hi:[1,0]")
    for j in range(8): A(f"v_cvt_pk_bf16_f32 v{NBr+j}, v{NUM+2*j}, v{NUM+2*j+1}")
    A(f"""
  v_mul_u32_u24 v2, 896, v5
  v_lshl_add_u32 v2, v4, 3, v2
  s_mul_i32 s48, s7, 56
  s_add_u32 s48, s48, {O_OFF}
  v_mov_b32 v11, 0x40000000
  v_cndmask_b32 v11, v2, v11, s[52:53]
  """)
    for q in range(4):
        vo = 11 if q == 3 else 2
        A(f"buffer_store_dwordx2 v[{NBr+2*q}:{NBr+2*q+1}], v{vo}, s[12:15], s48 offen offset:{16*q}")
    A.stamp(10)
    A.dump_stamps(22, "s[12:15]")
    A("s_endpgm")
```

```python
from asmlib import Asm

LOG2E = 0x3FB8AA3B
INV2PI = 0x3E22F983
XT_OFF = 0x000000
YT_OFF = 0x200000
KVP_OFF = 0x400000
O_OFF = 0x600000
G_OFF = 0x800000
WS_SIZE = 0x1000000
STG = 8704
CH_REG = 2 * STG
CPY = 4160
U_BASE = 2 * CH_REG
U_SZ = 4608
EX_BASE = U_BASE + 2 * U_SZ
B_LDS = EX_BASE + 4 * 2048

def interleave(*lists):
    out = []; idx = [0] * len(lists)
    while any(idx[i] < len(lists[i]) for i in range(len(lists))):
        for i, l in enumerate(lists):
            if idx[i] < len(l):
                out.append(l[idx[i]]); idx[i] += 1
    return out

def cmul(dst, z, w, t, conj=False):
    a = [f"v_pk_mul_f32 v[{t}:{t+1}], v[{z}:{z+1}], v[{w}:{w+1}] op_sel:[0,0] op_sel_hi:[1,0]"]
    if not conj:
        a.append(f"v_pk_fma_f32 v[{dst}:{dst+1}], v[{z}:{z+1}], v[{w}:{w+1}], v[{t}:{t+1}] op_sel:[1,1,0] op_sel_hi:[0,1,1] neg_lo:[1,0,0]")
    else:
        a.append(f"v_pk_fma_f32 v[{dst}:{dst+1}], v[{z}:{z+1}], v[{w}:{w+1}], v[{t}:{t+1}] op_sel:[1,1,0] op_sel_hi:[0,1,1] neg_hi:[1,0,0]")
    return a

def role_B(A):
    A.comment("================= ROLE B =================")
    A.stamp(0)
    A("""
  s_sub_u32 s3, s2, 256
  s_load_dwordx8 s[16:23], s[0:1], 40
  s_load_dwordx4 s[24:27], s[0:1], 72
  s_load_dwordx2 s[28:29], s[0:1], 88
  s_load_dwordx4 s[32:35], s[0:1], 120
  s_load_dwordx2 s[36:37], s[0:1], 0
  v_and_b32 v1, 63, v0
  v_lshrrev_b32 v2, 6, v0
  s_lshr_b32 s4, s3, 4
  s_and_b32 s5, s3, 15
  v_readfirstlane_b32 s6, v2
  """)
    A("""
  s_lshr_b32 s38, s6, 1
  s_and_b32 s39, s6, 1
  s_lshl_b32 s7, s3, 1
  s_add_u32 s7, s7, s38
  s_mul_i32 s42, s6, %d
  """ % STG)
    A("""
  s_lshl_b32 s40, s5, 7
  s_lshl_b32 s41, s6, 5
  s_add_u32 s43, s40, s41
  s_mul_i32 s40, s43, 896
  s_lshl_b32 s41, s4, 6
  s_add_u32 s40, s40, s41
  s_add_u32 s41, s40, 14336
  v_lshrrev_b32 v3, 2, v1
  v_mul_u32_u24 v3, 896, v3
  v_and_b32 v4, 3, v1
  v_lshl_add_u32 v3, v4, 4, v3
  v_lshlrev_b32 v5, 2, v1
  s_lshl_b32 s44, s7, 9
  s_lshl_b32 s45, s39, 8
  s_add_u32 s44, s44, s45
  v_add_u32 v5, s44, v5
  s_lshl_b32 s45, s7, 1
  v_mov_b32 v6, s45
  s_waitcnt lgkmcnt(0)
  s_mov_b32 s8, s36
  s_mov_b32 s9, s37
  s_mov_b32 s10, 1835008
  s_mov_b32 s11, 0x00020000
  s_mov_b32 s12, s34
  s_mov_b32 s13, s35
  s_mov_b32 s14, %d
  s_mov_b32 s15, 0x00020000
  s_mov_b32 m0, s42
  s_add_u32 s45, s42, 1024
  buffer_load_dwordx4 v3, s[8:11], s40 offen lds
  s_mov_b32 m0, s45
  s_nop 0
  buffer_load_dwordx4 v3, s[8:11], s41 offen lds
  global_load_dword v16, v5, s[16:17]
  global_load_dword v17, v5, s[18:19]
  global_load_dword v18, v5, s[20:21]
  global_load_dword v19, v5, s[22:23]
  global_load_dword v20, v5, s[24:25]
  global_load_dword v21, v5, s[26:27]
  global_load_ushort v22, v6, s[28:29]
  """ % WS_SIZE)
    A("""
  v_and_b32 v7, 15, v1
  v_lshrrev_b32 v8, 4, v1
  v_lshrrev_b32 v9, 2, v7
  v_lshl_add_u32 v9, v8, 3, v9
  v_lshlrev_b32 v9, 6, v9
  v_and_b32 v10, 3, v7
  v_lshl_add_u32 v9, v10, 3, v9
  v_add_u32 v9, s42, v9
  v_lshlrev_b32 v10, 12, v7
  v_lshl_add_u32 v10, v8, 4, v10
  s_lshl_b32 s45, s4, 17
  s_lshl_b32 s46, s43, 1
  s_add_u32 s45, s45, s46
  s_add_u32 s45, s45, %d
  s_add_u32 s46, s45, 65536
  s_waitcnt vmcnt(7)
  ;STAMP1
  ds_read_b64_tr_b16 v[24:25], v9
  ds_read_b64_tr_b16 v[26:27], v9 offset:256
  ds_read_b64_tr_b16 v[28:29], v9 offset:32
  ds_read_b64_tr_b16 v[30:31], v9 offset:288
  s_waitcnt lgkmcnt(2)
  buffer_store_dwordx4 v[24:27], v10, s[12:15], s45 offen sc1
  s_waitcnt lgkmcnt(0)
  buffer_store_dwordx4 v[28:31], v10, s[12:15], s46 offen sc1
  """ % XT_OFF)
    A("""
  v_lshlrev_b32 v11, 2, v1
  v_add_u32 v11, s42, v11
  v_and_b32 v12, 31, v1
  v_mul_u32_u24 v12, 272, v12
  v_lshrrev_b32 v13, 5, v1
  v_lshl_add_u32 v12, v13, 4, v12
  v_add_u32 v12, s42, v12
  s_mov_b32 s47, 0x%x
  s_mov_b32 s48, 0x%x
  s_waitcnt vmcnt(2)
  v_lshlrev_b32 v22, 16, v22
  v_mul_f32 v22, s47, v22
  v_exp_f32 v22, v22
  v_cvt_pk_bf16_f32 v22, v22, v22
  v_lshlrev_b32 v22, 16, v22
  """ % (LOG2E, INV2PI))
    A("""
  s_waitcnt vmcnt(0)
  s_barrier
  s_cmp_lg_u32 s6, 0
  s_cbranch_scc1 LB_nopub
  v_mov_b32 v2, 1
  s_lshl_b32 s45, s4, 2
  v_mov_b32 v3, s45
  s_mov_b64 s[50:51], exec
  s_mov_b64 exec, 1
  global_atomic_add v3, v2, s[32:33]
  s_mov_b64 exec, s[50:51]
LB_nopub:
  """)
    A.stamp(2)
    ACC = 96
    for i in range(16): A(f"v_mov_b32 v{ACC+i}, 0")
    A("s_mov_b32 s49, 0")
    A.label("LB_pass")
    ar, th, dbr, dbi = 32, 33, 34, 35
    W, E, E2, E4, E8, G = 36, 38, 40, 42, 44, 46
    t0, t1, t2 = 48, 50, 52
    Z1, Z2, Z3, Z4 = 54, 56, 58, 60
    P = 62
    c1, c2, c3, c4 = 64, 65, 66, 67
    AF = 112
    BF = 144
    A(f"""
  v_lshlrev_b32 v{ar}, 16, v16
  v_lshlrev_b32 v{th}, 16, v17
  v_lshlrev_b32 v{dbr}, 16, v18
  v_lshlrev_b32 v{dbi}, 16, v19
  v_lshlrev_b32 v{t0}, 16, v20
  v_lshlrev_b32 v{t0+1}, 16, v21
  v_mul_f32 v{ar}, v{ar}, v22
  v_mul_f32 v{th}, v{th}, v22
  v_mul_f32 v{dbr}, v{dbr}, v22
  v_mul_f32 v{dbi}, v{dbi}, v22
  v_mul_f32 v{ar}, s47, v{ar}
  v_mul_f32 v{th}, s48, v{th}
  """)
    A("\n".join(cmul(W, t0, dbr, t1)))
    def cis(dst, l, m, ph):
        return [f"v_mul_f32 v{m}, {l}, v{ar}" if isinstance(l, str) else f"v_mul_f32 v{m}, {float(l)}, v{ar}",
                f"v_mul_f32 v{ph}, {l}, v{th}" if isinstance(l, str) else f"v_mul_f32 v{ph}, {float(l)}, v{th}",
                f"v_exp_f32 v{m}, v{m}",
                f"v_fract_f32 v{ph}, v{ph}",
                f"v_cos_f32 v{dst}, v{ph}",
                f"v_sin_f32 v{dst+1}, v{ph}",
                f"v_pk_mul_f32 v[{dst}:{dst+1}], v[{dst}:{dst+1}], v[{m}:{m+1}] op_sel:[0,0] op_sel_hi:[1,0]"]
    import struct
    fl = lambda x: "0x%08x" % struct.unpack('<I', struct.pack('<f', x))[0]
    l1 = cis(E, fl(1.0), t0, t0+1); l8 = cis(E8, fl(8.0), t1, t1+1); l256 = cis(G, fl(256.0), t2, t2+1)
    for x in interleave(l1, l8, l256): A(x)
    A("\n".join(cmul(E2, E, E, t0)))
    A("\n".join(cmul(E4, E2, E2, t0)))
    def wr(z, rows, tmp):
        o = [f"v_cvt_pk_bf16_f32 v{tmp}, v{z}, v{z+1}"]
        for r in rows: o.append(f"ds_write_b32 v11, v{tmp} offset:{r*272}")
        return o
    ch1 = wr(W, [0], c1)
    prev = W
    for p in range(1, 8):
        ch1 += cmul(Z1, prev, E, t0) + wr(Z1, [p], c1); prev = Z1
    P256, P512, P768, PX = 68, 70, 72, 74
    pre = cmul(P256, W, G, t1) + cmul(P512, P256, G, t1) + cmul(P768, P512, G, t1)
    ch2 = wr(P256, [8], c2) + cmul(Z2, P256, E2, t1) + wr(Z2, [9], c2) + cmul(Z2, Z2, E2, t1) + wr(Z2, [10, 12], c2) \
        + cmul(Z2, Z2, E2, t1) + wr(Z2, [13], c2) + cmul(Z2, Z2, E2, t1) + wr(Z2, [14], c2)
    ch3 = wr(P512, [16], c3) + cmul(Z3, P512, E4, t2) + wr(Z3, [17, 20], c3) + cmul(Z3, Z3, E4, t2) + wr(Z3, [21], c3) \
        + wr(P768, [18], c3) + cmul(Z3, P768, E4, t2) + wr(Z3, [19, 22], c3) + cmul(Z3, Z3, E4, t2) + wr(Z3, [23], c3)
    t3 = 76
    ch4 = []
    prevp = P768
    for i in range(4):
        ch4 += cmul(PX, prevp, G, t3) + wr(PX, [24 + i], c4) + cmul(Z4, PX, E8, t3) + wr(Z4, [28 + i], c4)
        prevp = PX
    for x in pre: A(x)
    for x in interleave(ch1, ch2, ch3, ch4): A(x)
    A("s_waitcnt lgkmcnt(0)")
    for s in range(8): A(f"ds_read_b128 v[{AF+4*s}:{AF+4*s+3}], v12 offset:{32*s}")
    E16, E32, E64 = 36, 38, 40
    A("\n".join(cmul(E16, E8, E8, t0)))
    A("\n".join(cmul(E32, E16, E16, t0)))
    A("\n".join(cmul(E64, E32, E32, t0)))
    S8, S16, S24 = 42, 46, 68
    A("\n".join(cmul(S16, E64, E64, t0)))
    A("\n".join(cmul(S24, S16, E64, t0)))
    A(f"v_mov_b32 v{S8}, v{E64}")
    A(f"v_xor_b32 v{S8+1}, 0x80000000, v{E64+1}")
    A(f"v_xor_b32 v{S16+1}, 0x80000000, v{S16+1}")
    A(f"v_xor_b32 v{S24+1}, 0x80000000, v{S24+1}")
    A(f"v_mov_b32 v{Z1}, 1.0")
    A(f"v_mov_b32 v{Z1+1}, 0")
    A("s_waitcnt lgkmcnt(0)")
    ys = []
    for ci, (z, start, tt, cc) in enumerate([(Z1, Z1, t0, c1), (Z2, S8, t1, c2), (Z3, S16, t2, c3), (Z4, S24, t3, c4)]):
        l = wr(start, [8 * ci], cc)
        prev = start
        for j in range(1, 8):
            l += cmul(z, prev, E8, tt, conj=True) + wr(z, [8 * ci + j], cc); prev = z
        ys.append(l)
    for x in interleave(*ys): A(x)
    A("s_waitcnt lgkmcnt(0)")
    for s in range(8): A(f"ds_read_b128 v[{BF+4*s}:{BF+4*s+3}], v12 offset:{32*s}")
    for s in range(8):
        A(f"s_waitcnt lgkmcnt({7-s})")
        A(f"v_mfma_f32_32x32x16_bf16 v[{ACC}:{ACC+15}], v[{AF+4*s}:{AF+4*s+3}], v[{BF+4*s}:{BF+4*s+3}], v[{ACC}:{ACC+15}]")
    for i in range(16, 22): A(f"v_lshrrev_b32 v{i}, 16, v{i}")
    A("""
  s_add_u32 s49, s49, 1
  s_cmp_lt_u32 s49, 2
  s_cbranch_scc1 LB_pass
  """)
    A.stamp(3)
    A(f"""
  v_lshlrev_b32 v2, 4, v1
  s_lshl_b32 s45, s6, 11
  s_add_u32 s45, s45, {EX_BASE}
  v_add_u32 v3, s45, v2
  s_xor_b32 s46, s6, 1
  s_lshl_b32 s46, s46, 11
  s_add_u32 s46, s46, {EX_BASE}
  v_add_u32 v4, s46, v2
  s_nop 7
  s_nop 7
  s_cmp_eq_u32 s39, 0
  s_cbranch_scc1 LB_ex0
  ds_write_b128 v3, v[{ACC}:{ACC+3}]
  ds_write_b128 v3, v[{ACC+4}:{ACC+7}] offset:1024
  s_branch LB_ex1
LB_ex0:
  ds_write_b128 v3, v[{ACC+8}:{ACC+11}]
  ds_write_b128 v3, v[{ACC+12}:{ACC+15}] offset:1024
LB_ex1:
  s_cmp_lg_u32 s6, 0
  s_cbranch_scc1 LB_nopoll
  s_lshl_b32 s45, s4, 2
  v_mov_b32 v5, s45
  s_mov_b32 s46, 0
LB_poll:
  global_load_dword v6, v5, s[32:33] sc1
  s_waitcnt vmcnt(0)
  v_readfirstlane_b32 s45, v6
  s_cmp_ge_u32 s45, 16
  s_cbranch_scc1 LB_nopoll
  s_sleep 2
  s_add_u32 s46, s46, 1
  s_cmp_lt_u32 s46, 0x40000
  s_cbranch_scc1 LB_poll
LB_nopoll:
  s_waitcnt lgkmcnt(0)
  s_barrier
  """)
    A.stamp(4)
    A(f"""
  v_lshrrev_b32 v5, 7, v0
  v_and_b32 v6, 127, v0
  s_lshl_b32 s45, s3, 13
  v_lshlrev_b32 v7, 12, v5
  v_lshl_add_u32 v7, v6, 5, v7
  s_add_u32 s45, s45, {XT_OFF}
  buffer_load_dwordx4 v[80:83], v7, s[12:15], s45 offen sc1
  buffer_load_dwordx4 v[84:87], v7, s[12:15], s45 offen offset:16 sc1
  ds_read_b128 v[24:27], v4
  ds_read_b128 v[28:31], v4 offset:1024
  v_mul_u32_u24 v8, {U_SZ}, v5
  v_lshl_add_u32 v8, v6, 5, v8
  v_add_u32 v8, {U_BASE + 512}, v8
  v_and_b32 v9, 31, v1
  v_lshrrev_b32 v10, 5, v1
  s_mul_i32 s46, s38, {CH_REG}
  v_lshlrev_b32 v13, 4, v9
  v_lshl_add_u32 v13, v10, 3, v13
  v_sub_u32 v13, {2*2044}, v13
  v_add_u32 v13, s46, v13
  v_cmp_eq_u32 s[52:53], 1, v10
  s_cmp_eq_u32 s39, 1
  s_waitcnt lgkmcnt(0)
  s_cbranch_scc1 LB_w1
  """)
    for i in range(8): A(f"v_add_f32 v{24+i}, v{24+i}, v{ACC+i}")
    A(f"""
  v_cvt_pk_bf16_f32 v32, v27, v26
  v_cvt_pk_bf16_f32 v33, v25, v24
  v_cvt_pk_bf16_f32 v34, v30, v29
  v_cvt_pk_bf16_f32 v35, v28, v28
  v_subrev_u32 v14, 512, v13
  ds_write_b64 v13, v[32:33]
  ds_write_b64 v14, v[34:35]
  v_mov_b32 v36, 0
  v_mov_b32 v37, 0
  v_lshlrev_b32 v14, 3, v1
  v_add_u32 v14, s46, v14
  s_mov_b64 s[50:51], exec
  s_mov_b64 exec, 0xff
  ds_write_b64 v14, v[36:37] offset:4096
  s_mov_b64 exec, s[50:51]
  s_branch LB_w2
LB_w1:
  """)
    for i in range(8): A(f"v_add_f32 v{24+i}, v{24+i}, v{ACC+8+i}")
    A("""
  v_cndmask_b32 v32, v24, v25, s[52:53]
  v_cndmask_b32 v33, v26, v27, s[52:53]
  v_cvt_pk_bf16_f32 v34, v25, v32
  v_cvt_pk_bf16_f32 v35, v24, v24
  v_cvt_pk_bf16_f32 v36, v27, v33
  v_cvt_pk_bf16_f32 v37, v26, v26
  v_subrev_u32 v14, 1024, v13
  ds_write_b64 v14, v[34:35]
  v_subrev_u32 v14, 1536, v13
  ds_write_b64 v14, v[36:37]
  v_and_b32 v14, 1, v9
  v_and_b32 v14, v14, v10
  v_cmp_eq_u32 s[54:55], 1, v14
  """)
    for i in range(4):
        f = 28 + i
        A(f"""
  v_mov_b32 v38, v{f}
  v_mov_b32 v39, v{f}
  v_permlane32_swap_b32 v38, v39
  v_cndmask_b32 v38, v38, v{f}, s[54:55]
  v_cvt_pk_bf16_f32 v{40+2*i}, v{f}, v{f}
  v_cvt_pk_bf16_f32 v{41+2*i}, v{f}, v38
  v_subrev_u32 v14, {2048 + 512*i}, v13
  ds_write_b64 v14, v[{40+2*i}:{41+2*i}]
  """)
    A.label("LB_w2")
    A(f"""
  v_mov_b32 v36, 0
  v_mov_b32 v37, 0
  v_mov_b32 v38, 0
  v_mov_b32 v39, 0
  v_mul_u32_u24 v14, {U_SZ}, v5
  v_lshl_add_u32 v14, v6, 4, v14
  v_add_u32 v14, {U_BASE}, v14
  v_cmp_gt_u32 vcc, 32, v6
  s_and_saveexec_b64 s[50:51], vcc
  ds_write_b128 v14, v[36:39]
  s_mov_b64 exec, s[50:51]
  s_waitcnt lgkmcnt(0)
  s_barrier
  """)
    A.stamp(5)
    A(f"""
  s_lshl_b32 s45, s39, 10
  s_add_u32 s45, s45, s46
  v_lshlrev_b32 v14, 4, v1
  v_add_u32 v14, s45, v14
  ds_read_b128 v[24:27], v14
  ds_read_b64 v[28:29], v14 offset:16
  ds_read_b128 v[40:43], v14 offset:2048
  ds_read_b64 v[44:45], v14 offset:2064
  v_and_b32 v15, 1, v1
  v_lshlrev_b32 v15, 4, v15
  v_add_u32 v15, s46, v15
  ds_write_b128 v15, v[36:39] offset:{4096 + CPY}
  ds_write_b128 v15, v[36:39] offset:{4096 + 2*CPY}
  ds_write_b128 v15, v[36:39] offset:{4096 + 3*CPY}
  """)
    for (d, off, wait) in ((24, 0, 5), (40, 2048, 3)):
        A(f"s_waitcnt lgkmcnt({wait})")
        o1, o3 = 48, 52
        for k in range(4): A(f"v_alignbit_b32 v{o1+k}, v{d+k+1}, v{d+k}, 16")
        for k in range(4): A(f"v_alignbit_b32 v{o3+k}, v{d+k+2}, v{d+k+1}, 16")
        A(f"v_mov_b32 v56, v{d+1}\nv_mov_b32 v57, v{d+2}\nv_mov_b32 v58, v{d+3}\nv_mov_b32 v59, v{d+4}")
        A(f"ds_write_b128 v14, v[{o1}:{o1+3}] offset:{off + CPY}")
        A(f"ds_write_b128 v14, v[56:59] offset:{off + 2*CPY}")
        A(f"ds_write_b128 v14, v[{o3}:{o3+3}] offset:{off + 3*CPY}")
        A("s_nop 1")
    A("""
  s_waitcnt vmcnt(0)
  ds_write_b128 v8, v[80:83]
  ds_write_b128 v8, v[84:87] offset:16
  """)
    A(f"""
  v_and_b32 v2, 15, v1
  v_lshrrev_b32 v3, 4, v1
  v_and_b32 v4, 3, v2
  v_sub_u32 v4, 3, v4
  v_mul_u32_u24 v4, {CPY}, v4
  v_lshrrev_b32 v5, 2, v2
  v_lshlrev_b32 v5, 3, v5
  v_lshlrev_b32 v6, 4, v3
  v_sub_u32 v6, v6, v5
  v_add_u32 v6, {2*2028 - 64*63}, v6
  v_add3_u32 v4, v4, v6, s46
  s_mul_i32 s45, s38, {U_SZ}
  v_lshlrev_b32 v5, 5, v2
  v_lshl_add_u32 v5, v3, 4, v5
  v_add_u32 v5, {U_BASE + 32}, v5
  v_add_u32 v5, s45, v5
  v_lshlrev_b32 v6, 5, v2
  v_lshl_add_u32 v6, v3, 3, v6
  s_lshl_b32 s45, s7, 12
  s_add_u32 s45, s45, {YT_OFF}
  s_waitcnt lgkmcnt(0)
  s_barrier
  """)
    A.stamp(6)
    A("""
  s_cmp_eq_u32 s39, 1
  s_cbranch_scc1 LB_convB
  """)
    conv(A, [7, 6, 2], "A")
    A("s_branch LB_end")
    A.label("LB_convB")
    conv(A, [5, 4, 3, 1, 0], "B")
    A.label("LB_end")
    A.stamp(7)
    A.dump_stamps(8, "s[12:15]")
    A("s_endpgm")

def conv(A, ns, tag):
    kmax = max(ns)
    ACC = {n: 16 + 4 * i for i, n in enumerate(ns)}
    for n in ns:
        for r in range(4): A(f"v_mov_b32 v{ACC[n]+r}, 0")
    BSET = [40, 72]
    APOOL = [104 + 4 * i for i in range(6)]
    loads = []
    mf = []
    seq = []
    lid = 0
    loadinfo = {}
    order = []
    apool_i = 0
    for D in range(8):
        bid = {}
        for k in range(kmax + 1):
            m = 8 * k + D
            areg = APOOL[apool_i % len(APOOL)]; apool_i += 1
            loadinfo[lid] = ('A', areg, 64 * (63 - m)); aid = lid; lid += 1
            need_first = True
            for n in sorted(ns, reverse=True):
                if k > n: continue
                j = n - k
                if j not in bid:
                    sigma = 8 * j - D
                    loadinfo[lid] = ('B', BSET[D & 1] + 4 * j, 64 * (sigma + 7)); bid[j] = lid; lid += 1
                order.append((ACC[n], aid, bid[j]))
    first = {}
    for i, (acc, a, b) in enumerate(order):
        first.setdefault(a, i); first.setdefault(b, i)
    lseq = sorted(loadinfo, key=lambda x: (first[x], x))
    ninstr = {x: (2 if loadinfo[x][0] == 'A' else 1) for x in loadinfo}
    lastuse = {}
    for i, (acc, a, b) in enumerate(order):
        lastuse[a] = i; lastuse[b] = i
    prev_same = {}
    seen = {}
    for x in lseq:
        reg = loadinfo[x][1]
        prev_same[x] = seen.get(reg)
        seen[reg] = x
    issued = []
    li = 0
    LOOK = 12
    def outstanding_after(x):
        idx = issued.index(x)
        return sum(ninstr[y] for y in issued[idx+1:])
    done_upto = -1
    for i, (acc, a, b) in enumerate(order):
        while li < len(lseq):
            x = lseq[li]
            ps = prev_same[x]
            if ps is not None and lastuse[ps] >= i: break
            out = sum(ninstr[y] for y in issued[done_upto+1:])
            if out + ninstr[x] > LOOK and first[x] > i: break
            kind, reg, off = loadinfo[x]
            if kind == 'A':
                A(f"ds_read_b64 v[{reg}:{reg+1}], v4 offset:{off}")
                A(f"ds_read_b64 v[{reg+2}:{reg+3}], v4 offset:{off+8}")
            else:
                A(f"ds_read_b128 v[{reg}:{reg+3}], v5 offset:{off}")
            issued.append(x); li += 1
        needx = max(issued.index(a), issued.index(b))
        if needx > done_upto:
            A(f"s_waitcnt lgkmcnt({outstanding_after(issued[needx])})")
            done_upto = needx
        ar = loadinfo[a][1]; br = loadinfo[b][1]
        A(f"v_mfma_f32_16x16x32_bf16 v[{acc}:{acc+3}], v[{ar}:{ar+3}], v[{br}:{br+3}], v[{acc}:{acc+3}]")
    for n in ns:
        a = ACC[n]
        A(f"v_cvt_pk_bf16_f32 v{a}, v{a}, v{a+1}")
        A(f"v_cvt_pk_bf16_f32 v{a+1}, v{a+2}, v{a+3}")
        A(f"buffer_store_dwordx2 v[{a}:{a+1}], v6, s[12:15], s45 offen offset:{512*n}")
```

```python
from asmlib import Asm

LOG2E = 0x3FB8AA3B
INV2PI = 0x3E22F983
XT_OFF = 0x000000
YT_OFF = 0x200000
KVP_OFF = 0x400000
O_OFF = 0x600000
G_OFF = 0x800000
WS_SIZE = 0x1000000
STG = 8704
CH_REG = 2 * STG
CPY = 4160
U_BASE = 4 * CH_REG
U_SZ = 4608
EX_BASE = U_BASE + 4 * U_SZ
B_LDS = EX_BASE + 8 * 2048

def interleave(*lists):
    out = []; idx = [0] * len(lists)
    while any(idx[i] < len(lists[i]) for i in range(len(lists))):
        for i, l in enumerate(lists):
            if idx[i] < len(l):
                out.append(l[idx[i]]); idx[i] += 1
    return out

def cmul(dst, z, w, t, conj=False):
    a = [f"v_pk_mul_f32 v[{t}:{t+1}], v[{z}:{z+1}], v[{w}:{w+1}] op_sel:[0,0] op_sel_hi:[1,0]"]
    if not conj:
        a.append(f"v_pk_fma_f32 v[{dst}:{dst+1}], v[{z}:{z+1}], v[{w}:{w+1}], v[{t}:{t+1}] op_sel:[1,1,0] op_sel_hi:[0,1,1] neg_lo:[1,0,0]")
    else:
        a.append(f"v_pk_fma_f32 v[{dst}:{dst+1}], v[{z}:{z+1}], v[{w}:{w+1}], v[{t}:{t+1}] op_sel:[1,1,0] op_sel_hi:[0,1,1] neg_hi:[1,0,0]")
    return a

def role_B(A, ABASE=128):
    A.comment("================= ROLE B (v2) =================")
    A.stamp(0)
    A(f"""
  s_sub_u32 s3, s2, {ABASE}
  s_and_b32 s4, s3, 7
  s_mul_i32 s4, s4, 14
  s_lshr_b32 s3, s3, 3
  s_add_u32 s3, s3, s4
  s_load_dwordx8 s[16:23], s[0:1], 40
  s_load_dwordx4 s[24:27], s[0:1], 72
  s_load_dwordx2 s[28:29], s[0:1], 88
  s_load_dwordx4 s[32:35], s[0:1], 120
  s_load_dwordx2 s[36:37], s[0:1], 0
  v_and_b32 v1, 63, v0
  v_lshrrev_b32 v2, 6, v0
  s_nop 0
  v_readfirstlane_b32 s6, v2
  """)
    A("""
  s_lshr_b32 s38, s6, 1
  s_and_b32 s39, s6, 1
  s_lshl_b32 s7, s3, 2
  s_add_u32 s7, s7, s38
  s_mul_i32 s42, s6, %d
  """ % STG)
    A("""
  v_lshlrev_b32 v5, 2, v1
  s_lshl_b32 s44, s7, 9
  s_lshl_b32 s45, s39, 8
  s_add_u32 s44, s44, s45
  v_add_u32 v5, s44, v5
  s_lshl_b32 s45, s7, 1
  v_mov_b32 v6, s45
  v_mul_u32_u24 v3, 3584, v0
  s_lshl_b32 s45, s3, 3
  s_waitcnt lgkmcnt(0)
  s_mov_b32 s8, s36
  s_mov_b32 s9, s37
  s_mov_b32 s10, 1835008
  s_mov_b32 s11, 0x00020000
  s_mov_b32 s12, s34
  s_mov_b32 s13, s35
  s_mov_b32 s14, %d
  s_mov_b32 s15, 0x00020000
  global_load_dword v16, v5, s[16:17]
  global_load_dword v17, v5, s[18:19]
  global_load_dword v18, v5, s[20:21]
  global_load_dword v19, v5, s[22:23]
  global_load_dword v20, v5, s[24:25]
  global_load_dword v21, v5, s[26:27]
  global_load_ushort v22, v6, s[28:29]
  buffer_load_dwordx2 v[80:81], v3, s[8:11], s45 offen
  buffer_load_dwordx2 v[82:83], v3, s[8:11], s45 offen offset:896
  buffer_load_dwordx2 v[84:85], v3, s[8:11], s45 offen offset:1792
  buffer_load_dwordx2 v[86:87], v3, s[8:11], s45 offen offset:2688
  """ % WS_SIZE)
    A("""
  v_lshlrev_b32 v11, 2, v1
  v_add_u32 v11, s42, v11
  v_and_b32 v12, 31, v1
  v_mul_u32_u24 v12, 272, v12
  v_lshrrev_b32 v13, 5, v1
  v_lshl_add_u32 v12, v13, 4, v12
  v_add_u32 v12, s42, v12
  s_mov_b32 s47, 0x%x
  s_mov_b32 s48, 0x%x
  s_waitcnt vmcnt(4)
  """ % (LOG2E, INV2PI))
    A.stamp(2)
    A("""
  v_lshlrev_b32 v22, 16, v22
  v_mul_f32 v22, s47, v22
  v_exp_f32 v22, v22
  v_cvt_pk_bf16_f32 v22, v22, v22
  v_lshlrev_b32 v22, 16, v22
  """)
    ACC = 96
    for i in range(16): A(f"v_mov_b32 v{ACC+i}, 0")
    A("s_mov_b32 s49, 0")
    A.label("LB_pass")
    ar, th, dbr, dbi = 32, 33, 34, 35
    W, E, E2, E4, E8, G = 36, 38, 40, 42, 44, 46
    t0, t1, t2 = 48, 50, 52
    Z1, Z2, Z3, Z4 = 54, 56, 58, 60
    P = 62
    c1, c2, c3, c4 = 64, 65, 66, 67
    AF = 112
    BF = 144
    A(f"""
  v_lshlrev_b32 v{ar}, 16, v16
  v_lshlrev_b32 v{th}, 16, v17
  v_lshlrev_b32 v{dbr}, 16, v18
  v_lshlrev_b32 v{dbi}, 16, v19
  v_lshlrev_b32 v{t0}, 16, v20
  v_lshlrev_b32 v{t0+1}, 16, v21
  v_mul_f32 v{ar}, v{ar}, v22
  v_mul_f32 v{th}, v{th}, v22
  v_mul_f32 v{dbr}, v{dbr}, v22
  v_mul_f32 v{dbi}, v{dbi}, v22
  v_mul_f32 v{ar}, s47, v{ar}
  v_mul_f32 v{th}, s48, v{th}
  """)
    A("\n".join(cmul(W, t0, dbr, t1)))
    def cis(dst, l, m, ph):
        return [f"v_mul_f32 v{m}, {l}, v{ar}" if isinstance(l, str) else f"v_mul_f32 v{m}, {float(l)}, v{ar}",
                f"v_mul_f32 v{ph}, {l}, v{th}" if isinstance(l, str) else f"v_mul_f32 v{ph}, {float(l)}, v{th}",
                f"v_exp_f32 v{m}, v{m}",
                f"v_fract_f32 v{ph}, v{ph}",
                f"v_cos_f32 v{dst}, v{ph}",
                f"v_sin_f32 v{dst+1}, v{ph}",
                f"v_pk_mul_f32 v[{dst}:{dst+1}], v[{dst}:{dst+1}], v[{m}:{m+1}] op_sel:[0,0] op_sel_hi:[1,0]"]
    import struct
    fl = lambda x: "0x%08x" % struct.unpack('<I', struct.pack('<f', x))[0]
    l1 = cis(E, fl(1.0), t0, t0+1); l8 = cis(E8, fl(8.0), t1, t1+1); l256 = cis(G, fl(256.0), t2, t2+1)
    for x in interleave(l1, l8, l256): A(x)
    A("\n".join(cmul(E2, E, E, t0)))
    A("\n".join(cmul(E4, E2, E2, t0)))
    def wr(z, rows, tmp):
        o = [f"v_cvt_pk_bf16_f32 v{tmp}, v{z}, v{z+1}"]
        for r in rows: o.append(f"ds_write_b32 v11, v{tmp} offset:{r*272}")
        return o
    ch1 = wr(W, [0], c1)
    prev = W
    for p in range(1, 8):
        ch1 += cmul(Z1, prev, E, t0) + wr(Z1, [p], c1); prev = Z1
    P256, P512, P768, PX = 68, 70, 72, 74
    pre = cmul(P256, W, G, t1) + cmul(P512, P256, G, t1) + cmul(P768, P512, G, t1)
    ch2 = wr(P256, [8], c2) + cmul(Z2, P256, E2, t1) + wr(Z2, [9], c2) + cmul(Z2, Z2, E2, t1) + wr(Z2, [10, 12], c2) \
        + cmul(Z2, Z2, E2, t1) + wr(Z2, [13], c2) + cmul(Z2, Z2, E2, t1) + wr(Z2, [14], c2)
    ch3 = wr(P512, [16], c3) + cmul(Z3, P512, E4, t2) + wr(Z3, [17, 20], c3) + cmul(Z3, Z3, E4, t2) + wr(Z3, [21], c3) \
        + wr(P768, [18], c3) + cmul(Z3, P768, E4, t2) + wr(Z3, [19, 22], c3) + cmul(Z3, Z3, E4, t2) + wr(Z3, [23], c3)
    t3 = 76
    ch4 = []
    prevp = P768
    for i in range(4):
        ch4 += cmul(PX, prevp, G, t3) + wr(PX, [24 + i], c4) + cmul(Z4, PX, E8, t3) + wr(Z4, [28 + i], c4)
        prevp = PX
    for x in pre: A(x)
    for x in interleave(ch1, ch2, ch3, ch4): A(x)
    A("s_waitcnt lgkmcnt(0)")
    for s in range(8): A(f"ds_read_b128 v[{AF+4*s}:{AF+4*s+3}], v12 offset:{32*s}")
    E16, E32, E64 = 36, 38, 40
    A("\n".join(cmul(E16, E8, E8, t0)))
    A("\n".join(cmul(E32, E16, E16, t0)))
    A("\n".join(cmul(E64, E32, E32, t0)))
    S8, S16, S24 = 42, 46, 68
    A("\n".join(cmul(S16, E64, E64, t0)))
    A("\n".join(cmul(S24, S16, E64, t0)))
    A(f"v_mov_b32 v{S8}, v{E64}")
    A(f"v_xor_b32 v{S8+1}, 0x80000000, v{E64+1}")
    A(f"v_xor_b32 v{S16+1}, 0x80000000, v{S16+1}")
    A(f"v_xor_b32 v{S24+1}, 0x80000000, v{S24+1}")
    A(f"v_mov_b32 v{Z1}, 1.0")
    A(f"v_mov_b32 v{Z1+1}, 0")
    A("s_waitcnt lgkmcnt(0)")
    ys = []
    for ci, (z, start, tt, cc) in enumerate([(Z1, Z1, t0, c1), (Z2, S8, t1, c2), (Z3, S16, t2, c3), (Z4, S24, t3, c4)]):
        l = wr(start, [8 * ci], cc)
        prev = start
        for j in range(1, 8):
            l += cmul(z, prev, E8, tt, conj=True) + wr(z, [8 * ci + j], cc); prev = z
        ys.append(l)
    for x in interleave(*ys): A(x)
    A("s_waitcnt lgkmcnt(0)")
    for s in range(8): A(f"ds_read_b128 v[{BF+4*s}:{BF+4*s+3}], v12 offset:{32*s}")
    for s in range(8):
        A(f"s_waitcnt lgkmcnt({7-s})")
        A(f"v_mfma_f32_32x32x16_bf16 v[{ACC}:{ACC+15}], v[{AF+4*s}:{AF+4*s+3}], v[{BF+4*s}:{BF+4*s+3}], v[{ACC}:{ACC+15}]")
    for i in range(16, 22): A(f"v_lshrrev_b32 v{i}, 16, v{i}")
    A("""
  s_add_u32 s49, s49, 1
  s_cmp_lt_u32 s49, 2
  s_cbranch_scc1 LB_pass
  """)
    A.stamp(3)
    A(f"""
  v_lshlrev_b32 v2, 4, v1
  s_lshl_b32 s45, s6, 11
  s_add_u32 s45, s45, {EX_BASE}
  v_add_u32 v3, s45, v2
  s_xor_b32 s46, s6, 1
  s_lshl_b32 s46, s46, 11
  s_add_u32 s46, s46, {EX_BASE}
  v_add_u32 v4, s46, v2
  s_nop 7
  s_nop 7
  s_cmp_eq_u32 s39, 0
  s_cbranch_scc1 LB_ex0
  ds_write_b128 v3, v[{ACC}:{ACC+3}]
  ds_write_b128 v3, v[{ACC+4}:{ACC+7}] offset:1024
  s_branch LB_ex1
LB_ex0:
  ds_write_b128 v3, v[{ACC+8}:{ACC+11}]
  ds_write_b128 v3, v[{ACC+12}:{ACC+15}] offset:1024
LB_ex1:
  s_waitcnt lgkmcnt(0)
  s_barrier
  """)
    A.stamp(4)
    A(f"""
  ds_read_b128 v[24:27], v4
  ds_read_b128 v[28:31], v4 offset:1024
  s_mov_b32 s45, 0x05040100
  s_mov_b32 s46, 0x07060302
  s_waitcnt vmcnt(0)
  v_perm_b32 v88, v82, v80, s45
  v_perm_b32 v89, v86, v84, s45
  v_perm_b32 v90, v82, v80, s46
  v_perm_b32 v91, v86, v84, s46
  v_perm_b32 v92, v83, v81, s45
  v_perm_b32 v93, v87, v85, s45
  v_perm_b32 v94, v83, v81, s46
  v_perm_b32 v95, v87, v85, s46
  v_lshlrev_b32 v8, 3, v0
  v_add_u32 v8, {U_BASE + 512}, v8
  ds_write_b64 v8, v[88:89]
  ds_write_b64 v8, v[90:91] offset:{U_SZ}
  ds_write_b64 v8, v[92:93] offset:{2*U_SZ}
  ds_write_b64 v8, v[94:95] offset:{3*U_SZ}
  v_and_b32 v9, 31, v1
  v_lshrrev_b32 v10, 5, v1
  s_mul_i32 s46, s38, {CH_REG}
  v_lshlrev_b32 v13, 4, v9
  v_lshl_add_u32 v13, v10, 3, v13
  v_sub_u32 v13, {2*2044}, v13
  v_add_u32 v13, s46, v13
  v_cmp_eq_u32 s[52:53], 1, v10
  s_cmp_eq_u32 s39, 1
  s_waitcnt lgkmcnt(4)
  s_cbranch_scc1 LB_w1
  """)
    for i in range(8): A(f"v_add_f32 v{24+i}, v{24+i}, v{ACC+i}")
    A(f"""
  v_cvt_pk_bf16_f32 v32, v27, v26
  v_cvt_pk_bf16_f32 v33, v25, v24
  v_cvt_pk_bf16_f32 v34, v30, v29
  v_cvt_pk_bf16_f32 v35, v28, v28
  v_subrev_u32 v14, 512, v13
  ds_write_b64 v13, v[32:33]
  ds_write_b64 v14, v[34:35]
  v_mov_b32 v36, 0
  v_mov_b32 v37, 0
  v_lshlrev_b32 v14, 3, v1
  v_add_u32 v14, s46, v14
  s_mov_b64 s[50:51], exec
  s_mov_b64 exec, 0xff
  ds_write_b64 v14, v[36:37] offset:4096
  s_mov_b64 exec, s[50:51]
  s_branch LB_w2
LB_w1:
  """)
    for i in range(8): A(f"v_add_f32 v{24+i}, v{24+i}, v{ACC+8+i}")
    A("""
  v_cndmask_b32 v32, v24, v25, s[52:53]
  v_cndmask_b32 v33, v26, v27, s[52:53]
  v_cvt_pk_bf16_f32 v34, v25, v32
  v_cvt_pk_bf16_f32 v35, v24, v24
  v_cvt_pk_bf16_f32 v36, v27, v33
  v_cvt_pk_bf16_f32 v37, v26, v26
  v_subrev_u32 v14, 1024, v13
  ds_write_b64 v14, v[34:35]
  v_subrev_u32 v14, 1536, v13
  ds_write_b64 v14, v[36:37]
  v_and_b32 v14, 1, v9
  v_and_b32 v14, v14, v10
  v_cmp_eq_u32 s[54:55], 1, v14
  """)
    for i in range(4):
        f = 28 + i
        A(f"""
  v_mov_b32 v38, v{f}
  v_mov_b32 v39, v{f}
  v_permlane32_swap_b32 v38, v39
  v_cndmask_b32 v38, v38, v{f}, s[54:55]
  v_cvt_pk_bf16_f32 v{40+2*i}, v{f}, v{f}
  v_cvt_pk_bf16_f32 v{41+2*i}, v{f}, v38
  v_subrev_u32 v14, {2048 + 512*i}, v13
  ds_write_b64 v14, v[{40+2*i}:{41+2*i}]
  """)
    A.label("LB_w2")
    A(f"""
  v_mov_b32 v36, 0
  v_mov_b32 v37, 0
  v_mov_b32 v38, 0
  v_mov_b32 v39, 0
  v_lshrrev_b32 v5, 5, v0
  v_and_b32 v6, 31, v0
  v_mul_u32_u24 v14, {U_SZ}, v5
  v_lshl_add_u32 v14, v6, 4, v14
  v_add_u32 v14, {U_BASE}, v14
  v_cmp_gt_u32 vcc, 128, v0
  s_and_saveexec_b64 s[50:51], vcc
  ds_write_b128 v14, v[36:39]
  s_mov_b64 exec, s[50:51]
  s_waitcnt lgkmcnt(0)
  s_barrier
  """)
    A.stamp(5)
    A(f"""
  s_lshl_b32 s45, s39, 10
  s_add_u32 s45, s45, s46
  v_lshlrev_b32 v14, 4, v1
  v_add_u32 v14, s45, v14
  ds_read_b128 v[24:27], v14
  ds_read_b64 v[28:29], v14 offset:16
  ds_read_b128 v[40:43], v14 offset:2048
  ds_read_b64 v[44:45], v14 offset:2064
  v_and_b32 v15, 1, v1
  v_lshlrev_b32 v15, 4, v15
  v_add_u32 v15, s46, v15
  ds_write_b128 v15, v[36:39] offset:{4096 + CPY}
  ds_write_b128 v15, v[36:39] offset:{4096 + 2*CPY}
  ds_write_b128 v15, v[36:39] offset:{4096 + 3*CPY}
  """)
    for (d, off, wait) in ((24, 0, 5), (40, 2048, 3)):
        A(f"s_waitcnt lgkmcnt({wait})")
        o1, o3 = 48, 52
        for k in range(4): A(f"v_alignbit_b32 v{o1+k}, v{d+k+1}, v{d+k}, 16")
        for k in range(4): A(f"v_alignbit_b32 v{o3+k}, v{d+k+2}, v{d+k+1}, 16")
        A(f"v_mov_b32 v56, v{d+1}\nv_mov_b32 v57, v{d+2}\nv_mov_b32 v58, v{d+3}\nv_mov_b32 v59, v{d+4}")
        A(f"ds_write_b128 v14, v[{o1}:{o1+3}] offset:{off + CPY}")
        A(f"ds_write_b128 v14, v[56:59] offset:{off + 2*CPY}")
        A(f"ds_write_b128 v14, v[{o3}:{o3+3}] offset:{off + 3*CPY}")
        A("s_nop 1")
    A(f"""
  v_and_b32 v2, 15, v1
  v_lshrrev_b32 v3, 4, v1
  v_and_b32 v4, 3, v2
  v_sub_u32 v4, 3, v4
  v_mul_u32_u24 v4, {CPY}, v4
  v_lshrrev_b32 v5, 2, v2
  v_lshlrev_b32 v5, 3, v5
  v_lshlrev_b32 v6, 4, v3
  v_sub_u32 v6, v6, v5
  v_add_u32 v6, {2*2028 - 64*63}, v6
  v_add3_u32 v4, v4, v6, s46
  s_mul_i32 s45, s38, {U_SZ}
  v_lshlrev_b32 v5, 5, v2
  v_lshl_add_u32 v5, v3, 4, v5
  v_add_u32 v5, {U_BASE + 32}, v5
  v_add_u32 v5, s45, v5
  v_lshlrev_b32 v6, 5, v2
  v_lshl_add_u32 v6, v3, 3, v6
  s_lshl_b32 s45, s7, 12
  s_add_u32 s45, s45, {YT_OFF}
  s_waitcnt lgkmcnt(0)
  s_barrier
  """)
    A.stamp(6)
    A("""
  s_cmp_eq_u32 s39, 1
  s_cbranch_scc1 LB_convB
  """)
    conv(A, [7, 6, 2], "A")
    A("s_branch LB_end")
    A.label("LB_convB")
    conv(A, [5, 4, 3, 1, 0], "B")
    A.label("LB_end")
    A.stamp(7)
    A.dump_stamps(8, "s[12:15]")
    A("s_endpgm")

def conv(A, ns, tag):
    kmax = max(ns)
    ACC = {n: 16 + 4 * i for i, n in enumerate(ns)}
    for n in ns:
        for r in range(4): A(f"v_mov_b32 v{ACC[n]+r}, 0")
    BSET = [40, 72]
    APOOL = [104 + 4 * i for i in range(6)]
    loads = []
    mf = []
    seq = []
    lid = 0
    loadinfo = {}
    order = []
    apool_i = 0
    for D in range(8):
        bid = {}
        for k in range(kmax + 1):
            m = 8 * k + D
            areg = APOOL[apool_i % len(APOOL)]; apool_i += 1
            loadinfo[lid] = ('A', areg, 64 * (63 - m)); aid = lid; lid += 1
            need_first = True
            for n in sorted(ns, reverse=True):
                if k > n: continue
                j = n - k
                if j not in bid:
                    sigma = 8 * j - D
                    loadinfo[lid] = ('B', BSET[D & 1] + 4 * j, 64 * (sigma + 7)); bid[j] = lid; lid += 1
                order.append((ACC[n], aid, bid[j]))
    first = {}
    for i, (acc, a, b) in enumerate(order):
        first.setdefault(a, i); first.setdefault(b, i)
    lseq = sorted(loadinfo, key=lambda x: (first[x], x))
    ninstr = {x: (2 if loadinfo[x][0] == 'A' else 1) for x in loadinfo}
    lastuse = {}
    for i, (acc, a, b) in enumerate(order):
        lastuse[a] = i; lastuse[b] = i
    prev_same = {}
    seen = {}
    for x in lseq:
        reg = loadinfo[x][1]
        prev_same[x] = seen.get(reg)
        seen[reg] = x
    issued = []
    li = 0
    LOOK = 12
    def outstanding_after(x):
        idx = issued.index(x)
        return sum(ninstr[y] for y in issued[idx+1:])
    done_upto = -1
    for i, (acc, a, b) in enumerate(order):
        while li < len(lseq):
            x = lseq[li]
            ps = prev_same[x]
            if ps is not None and lastuse[ps] >= i: break
            out = sum(ninstr[y] for y in issued[done_upto+1:])
            if out + ninstr[x] > LOOK and first[x] > i: break
            kind, reg, off = loadinfo[x]
            if kind == 'A':
                A(f"ds_read_b64 v[{reg}:{reg+1}], v4 offset:{off}")
                A(f"ds_read_b64 v[{reg+2}:{reg+3}], v4 offset:{off+8}")
            else:
                A(f"ds_read_b128 v[{reg}:{reg+3}], v5 offset:{off}")
            issued.append(x); li += 1
        needx = max(issued.index(a), issued.index(b))
        if needx > done_upto:
            A(f"s_waitcnt lgkmcnt({outstanding_after(issued[needx])})")
            done_upto = needx
        ar = loadinfo[a][1]; br = loadinfo[b][1]
        A(f"v_mfma_f32_16x16x32_bf16 v[{acc}:{acc+3}], v[{ar}:{ar+3}], v[{br}:{br+3}], v[{acc}:{acc+3}]")
    for n in ns:
        a = ACC[n]
        A(f"v_cvt_pk_bf16_f32 v{a}, v{a}, v{a+1}")
        A(f"v_cvt_pk_bf16_f32 v{a+1}, v{a+2}, v{a+3}")
        A(f"buffer_store_dwordx2 v[{a}:{a+1}], v6, s[12:15], s45 offen offset:{512*n}")
```

```python
import sys, os
from asmlib import Asm
import roleB2, roleA2, k2
NAME = "gated_mix__linear_kernel_hedgehog__ssm_conv_s4__prompt"
HEADER = open("cdna_kernels/" + NAME + ".s.ref").read().split("; Override launch geometry")[0]

def kd(name, vgpr, sgpr=96):
    return f""".amdhsa_kernel {name}
  .amdhsa_next_free_vgpr {vgpr}
  .amdhsa_next_free_sgpr {sgpr}
  .amdhsa_accum_offset {vgpr}
  .amdhsa_group_segment_fixed_size 0
  .amdhsa_kernarg_size 136
  .amdhsa_user_sgpr_count 2
  .amdhsa_user_sgpr_kernarg_segment_ptr 1
  .amdhsa_system_sgpr_workgroup_id_x 1
.end_amdhsa_kernel
"""

def build(parts=("A", "B", "K2")):
    out = HEADER
    out += "; @launch kernel=k1_kernel grid=(240,1,1) block=(512,1,1) lds=155648\n"
    if "K2" in parts:
        out += "; @launch kernel=k2_kernel grid=(224,1,1) block=(256,1,1) lds=65536\n"
    out += '.amdgcn_target "amdgcn-amd-amdhsa--gfx950"\n.text\n'
    A = Asm()
    A(""".globl k1_kernel
.p2align 8
.type k1_kernel,@function
k1_kernel:
  s_cmp_ge_u32 s2, 240
  s_cbranch_scc1 LK1_exit
  s_getpc_b64 s[58:59]
LK1_pc:
  s_lshr_b32 s3, s2, 3
  s_lshl_b32 s3, s3, 10
  v_lshlrev_b32 v1, 7, v0
  v_cmp_gt_u32 s[62:63], 8, v0
  v_add_u32 v1, s3, v1
  v_cmp_gt_u32 vcc, LCODE_END-LK1_pc, v1
  s_and_b64 vcc, vcc, s[62:63]
  s_and_saveexec_b64 s[60:61], vcc
  s_cbranch_execz LK1_nopf
  global_load_dword v127, v1, s[58:59]
LK1_nopf:
  s_mov_b64 exec, s[60:61]
  s_cmp_ge_u32 s2, 128
  s_cbranch_scc1 LK1_B
""")
    if "A" in parts: roleA2.role_A(A)
    A("""LK1_exit:
  s_endpgm
LK1_B:
""")
    if "B" in parts: roleB2.role_B(A)
    else: A("s_endpgm")
    out += A.finalize()
    if "K2" in parts:
        A2 = Asm()
        A2(""".globl k2_kernel
.p2align 8
.type k2_kernel,@function
k2_kernel:
""")
        k2.k2(A2)
        out += A2.finalize()
    out += "LCODE_END:\n"
    out += '.section .rodata,"a"\n.p2align 6\n' + kd("k1_kernel", 256)
    if "K2" in parts:
        out += ".p2align 6\n" + kd("k2_kernel", 208)
    return out

if __name__ == "__main__":
    if os.environ.get("PROF"): Asm.PROFILE = True
    parts = sys.argv[2].split(",") if len(sys.argv) > 2 else ("A", "B", "K2")
    open(sys.argv[1], "w").write(build(parts))
```

```python
from roleB import LOG2E, KVP_OFF, O_OFF, G_OFF, WS_SIZE
from roleA import softmax_feats
import stageF
WK = 0
WV = 28672
XR = 57344
WQ = XR
RED = XR + 28672
KVF = 151552

X = 128
FR = 64
ACK = 32
ACV = 48
PHI = 240
IDF = 248

def mix(A, mf, others):
    n = len(mf); k = 0
    for i, m in enumerate(mf):
        A(m)
        tgt = (len(others) * (i + 1) + n - 1) // n
        while k < min(tgt, len(others)):
            A(others[k]); k += 1

class VM:
    def __init__(self): self.q = []
    def add(self, tag): self.q.append(tag)
    def wait(self, tag):
        idx = max(i for i, t in enumerate(self.q) if t == tag)
        n = len(self.q) - 1 - idx
        self.q = self.q[idx+1:]
        return n

def role_A(A, NB=128):
    A.comment("================= ROLE A (v2) =================")
    A.stamp(0)
    A("""
  s_load_dwordx4 s[36:39], s[0:1], 0
  s_load_dwordx2 s[40:41], s[0:1], 16
  s_load_dwordx2 s[24:25], s[0:1], 104
  s_load_dwordx4 s[32:35], s[0:1], 120
  v_and_b32 v1, 63, v0
  v_lshrrev_b32 v2, 6, v0
  s_and_b32 s3, s2, 7
  s_lshr_b32 s4, s2, 3
  v_readfirstlane_b32 s6, v2
  s_lshr_b32 s5, s3, 1
  s_lshl_b32 s5, s5, 1
  s_and_b32 s42, s4, 1
  s_add_u32 s5, s5, s42
  s_and_b32 s7, s3, 1
  s_lshl_b32 s7, s7, 3
  s_lshr_b32 s42, s4, 1
  s_add_u32 s7, s7, s42
  """)
    A("""
  v_and_b32 v3, 31, v1
  v_lshrrev_b32 v4, 5, v1
  s_lshl_b32 s42, s5, 8
  s_lshl_b32 s43, s6, 5
  s_add_u32 s43, s42, s43
  v_add_u32 v5, s43, v3
  v_lshrrev_b32 v7, 3, v1
  v_and_b32 v8, 7, v1
  v_xor_b32 v8, v8, v7
  v_mul_u32_u24 v6, 896, v7
  v_lshl_add_u32 v6, v8, 4, v6
  s_mul_i32 s44, s43, 896
  v_lshrrev_b32 v7, 2, v1
  v_mul_u32_u24 v7, 2688, v7
  v_and_b32 v8, 3, v1
  v_lshl_add_u32 v7, v8, 4, v7
  s_mul_i32 s45, s7, 56
  v_add_u32 v7, s45, v7
  s_and_b32 s46, s6, 3
  s_lshr_b32 s47, s6, 2
  s_mul_i32 s48, s46, 43008
  s_mul_i32 s49, s47, 896
  s_add_u32 s48, s48, s49
  s_add_u32 s48, s48, 896
  s_mul_i32 s49, s47, 28672
  s_lshl_b32 s50, s46, 10
  s_add_u32 s49, s49, s50
  s_lshl_b32 s50, s6, 12
  s_waitcnt lgkmcnt(0)
  s_mov_b32 s8, s36
  s_mov_b32 s9, s37
  s_mov_b32 s10, 1835008
  s_mov_b32 s11, 0x00020000
  s_mov_b32 s12, s34
  s_mov_b32 s13, s35
  s_mov_b32 s14, %d
  s_mov_b32 s15, 0x00020000
  s_mov_b32 s16, s38
  s_mov_b32 s17, s39
  s_mov_b32 s18, 1204224
  s_mov_b32 s19, 0x00020000
  s_mov_b32 s20, s40
  s_mov_b32 s21, s41
  s_mov_b32 s22, 25088
  s_mov_b32 s23, 0x00020000
  """ % WS_SIZE)
    A.stamp(11)
    A("""
  s_or_b32 s51, s2, s6
  s_cmp_lg_u32 s51, 0
  s_cbranch_scc1 LA_notok
  s_memrealtime s[56:57]
  s_waitcnt lgkmcnt(0)
  s_or_b32 s56, s56, 1
  v_mov_b32 v2, s56
  v_mov_b32 v9, 0
  s_mov_b64 s[56:57], exec
  s_mov_b64 exec, 1
  global_store_dword v9, v2, s[32:33] sc1
  s_mov_b64 exec, s[56:57]
LA_notok:
  """)
    vm = VM()
    A("""
  s_lshr_b32 s51, s4, 1
  s_and_b32 s54, s4, 1
  s_mul_i32 s54, s54, 3
  s_add_u32 s51, s51, s54
  s_sub_u32 s54, s51, 7
  s_cmp_ge_u32 s51, 7
  s_cselect_b32 s51, s54, s51
  s_sub_u32 s54, s51, 7
  s_cmp_ge_u32 s51, 7
  s_cselect_b32 s88, s54, s51
  """)
    for j in range(1, 7):
        A(f"s_add_u32 s{88+j}, s{88+j-1}, 1\ns_cmp_ge_u32 s{88+j}, 7\ns_cselect_b32 s{88+j}, 0, s{88+j}")
    def dma_x(c, A=A):
        slot = XR + 32768 * (c % 3)
        for j in range(4):
            A(f"s_add_u32 m0, s50, {slot + 1024*j}\ns_lshl_b32 s55, s{88+c}, 7\ns_add_u32 s55, s55, s44\ns_add_u32 s55, s55, {7168*j}\nbuffer_load_dwordx4 v6, s[8:11], s55 offen lds")
            vm.add(f"x{c}")
    def dma_w(c, A=A):
        A(f"s_lshl_b32 s55, s{88+c}, 12\ns_add_u32 m0, s49, s55\ns_mul_i32 s55, s{88+c}, 172032\ns_add_u32 s55, s55, s48\nbuffer_load_dwordx4 v7, s[16:19], s55 offen lds")
        vm.add(f"w{c}")
    for c in range(2):
        dma_w(c); dma_x(c)
        if c < 1: A("s_barrier")
    A("v_cmp_eq_u32 s[52:53], 1, v4")
    PH = 12
    def small_loads():
        A("""
  v_cmp_lt_u32 vcc, 27, v3
  v_subrev_u32 v10, 4, v3
  s_mul_i32 s51, s7, 1568
  v_cndmask_b32 v10, v3, v10, vcc
  v_lshlrev_b32 v10, 1, v10
  v_mul_u32_u24 v11, 224, v4
  v_add3_u32 v10, v10, v11, s51
  v_cmp_eq_u32 s[52:53], 1, v4
  v_mov_b32 v11, 0x40000000
  v_cndmask_b32 v11, v10, v11, s[52:53]
  """)
        for s in range(2):
            for i in range(8):
                cc = 16 * s + (i & 3) + 8 * (i >> 2)
                vo = 11 if (s == 1 and i >= 4) else 10
                A(f"buffer_load_ushort v{PH+8*s+i}, v{vo}, s[20:23], 0 offen offset:{cc*56}")
                vm.add("phi")
        A("""
  v_min_u32 v30, 447, v0
  v_lshlrev_b32 v30, 1, v30
  global_load_ushort v29, v30, s[24:25]
  """)
        vm.add("gw")
    A("""
  v_mov_b32 v9, 1.0
  v_cndmask_b32 v9, v9, 0, s[52:53]
  s_mov_b32 s47, 0x%x
  s_mov_b32 s46, 0x%x
  v_lshlrev_b32 v31, 2, v4
  v_sub_u32 v31, v3, v31
  """ % (LOG2E, LOG2E))
    for s in range(2):
        for j in range(4):
            i0, i1 = 2 * j, 2 * j + 1
            f0 = 16 * s + (i0 & 3) + 8 * (i0 >> 2); f1 = 16 * s + (i1 & 3) + 8 * (i1 >> 2)
            r = IDF + 4 * s + j
            A(f"v_cmp_eq_u32 vcc, {f0}, v31")
            A(f"v_cmp_eq_u32 s[54:55], {f1}, v31")
            A(f"v_mov_b32 v2, 0x3f80")
            A(f"v_mov_b32 v30, 0x3f800000")
            A(f"v_cndmask_b32 v{r}, 0, v2, vcc")
            A(f"v_cndmask_b32 v{r}, v{r}, v30, s[54:55]")
    A("""
  v_and_b32 v2, 15, v1
  v_lshrrev_b32 v8, 4, v1
  v_lshrrev_b32 v31, 1, v8
  v_lshlrev_b32 v31, 3, v31
  v_lshrrev_b32 v28, 2, v2
  v_add_u32 v31, v31, v28
  v_lshlrev_b32 v31, 6, v31
  v_and_b32 v8, 1, v8
  v_lshl_add_u32 v31, v8, 5, v31
  v_and_b32 v2, 3, v2
  v_lshl_add_u32 v8, v2, 3, v31
  v_and_b32 v2, 7, v3
  v_lshlrev_b32 v28, 7, v3
  v_add_u32 v28, s50, v28
  """)
    XA = [240, 241, 242, 243]
    for kk in range(4):
        A(f"v_xor_b32 v{XA[kk]}, {2*kk}, v4" if False else f"v_add_u32 v{XA[kk]}, {2*kk}, v4")
        A(f"v_xor_b32 v{XA[kk]}, v{XA[kk]}, v2")
        A(f"v_lshl_add_u32 v{XA[kk]}, v{XA[kk]}, 4, v28")
        A(f"v_add_u32 v{XA[kk]}, {XR}, v{XA[kk]}")
    for i in range(16):
        A(f"v_mov_b32 v{ACK+i}, 0")
        A(f"v_mov_b32 v{ACV+i}, 0")
    def reads(c):
        b = FR + 32 * (c & 1)
        slot = 32768 * (c % 3)
        for kk in range(4):
            ks = 4 * c + kk
            A(f"ds_read_b128 v[{X+4*ks}:{X+4*ks+3}], v{XA[kk]} offset:{slot}" if slot < 65536 else "")
            for si, R in enumerate((WK, WV)):
                r = b + 16 * si + 4 * kk
                A(f"ds_read_b64_tr_b16 v[{r}:{r+1}], v8 offset:{R + 1024*ks}")
                A(f"ds_read_b64_tr_b16 v[{r+2}:{r+3}], v8 offset:{R + 1024*ks + 256}")
    def reads2(c):
        b = FR + 32 * (c & 1)
        sl = c % 3
        if sl == 2:
            for kk in range(4): A(f"v_add_u32 v{XA[kk]}, 0x8000, v{XA[kk]}")
        off = 32768 * sl if sl < 2 else 32768
        A(f"s_lshl_b32 s51, s{88+c}, 12")
        A(f"v_add_u32 v28, s51, v8")
        for kk in range(4):
            ks = 4 * c + kk
            A(f"ds_read_b128 v[{X+4*ks}:{X+4*ks+3}], v{XA[kk]} offset:{off}")
            for si, R in enumerate((WK, WV)):
                r = b + 16 * si + 4 * kk
                A(f"ds_read_b64_tr_b16 v[{r}:{r+1}], v28 offset:{R + 1024*kk}")
                A(f"ds_read_b64_tr_b16 v[{r+2}:{r+3}], v28 offset:{R + 1024*kk + 256}")
        if sl == 2:
            for kk in range(4): A(f"v_subrev_u32 v{XA[kk]}, 0x8000, v{XA[kk]}")
    def reads_list(c):
        L = []
        b = FR + 32 * (c & 1)
        sl = c % 3
        if sl == 2:
            for kk in range(4): L.append(f"v_add_u32 v{XA[kk]}, 0x8000, v{XA[kk]}")
        off = 32768 * sl if sl < 2 else 32768
        L.append(f"s_lshl_b32 s51, s{88+c}, 12")
        L.append(f"v_add_u32 v28, s51, v8")
        for kk in range(4):
            ks = 4 * c + kk
            L.append(f"ds_read_b128 v[{X+4*ks}:{X+4*ks+3}], v{XA[kk]} offset:{off}")
            for si, R in enumerate((WK, WV)):
                r = b + 16 * si + 4 * kk
                L.append(f"ds_read_b64_tr_b16 v[{r}:{r+1}], v28 offset:{R + 1024*kk}")
                L.append(f"ds_read_b64_tr_b16 v[{r+2}:{r+3}], v28 offset:{R + 1024*kk + 256}")
        if sl == 2:
            for kk in range(4): L.append(f"v_subrev_u32 v{XA[kk]}, 0x8000, v{XA[kk]}")
        return L
    def run_loop(second):
        pass
        n = vm.wait("x0"); A(f"s_waitcnt vmcnt({n})")
        pass
        A("s_barrier")
        A.stamp(17 if second else 1)
        for x in reads_list(0): A(x)
        dma_w(2); dma_x(2)
        for c in range(7):
            A("s_waitcnt lgkmcnt(0)")
            rl = []
            if c < 6:
                n = vm.wait(f"x{c+1}")
                A(f"s_waitcnt vmcnt({n})")
                A("s_barrier")
                rl = reads_list(c + 1)
            if c + 3 < 7:
                dma_w(c + 3, rl.append); dma_x(c + 3, rl.append)
            if c == 4 and not second: small_loads()
            b = FR + 32 * (c & 1)
            mf = []
            for kk in range(4):
                ks = 4 * c + kk
                xr = X + 4 * ks
                mf.append(f"v_mfma_f32_32x32x16_bf16 v[{ACK}:{ACK+15}], v[{b+4*kk}:{b+4*kk+3}], v[{xr}:{xr+3}], v[{ACK}:{ACK+15}]")
                mf.append(f"v_mfma_f32_32x32x16_bf16 v[{ACV}:{ACV+15}], v[{xr}:{xr+3}], v[{b+16+4*kk}:{b+16+4*kk+3}], v[{ACV}:{ACV+15}]")
            import os
            if os.environ.get("NOMFMA"): mf = []
            if os.environ.get("NOREADS"): rl = []
            if mf: mix(A, mf, rl)
            else:
                for x in rl: A(x)
    run_loop(False)
    import os
    if os.environ.get("TWICE"):
        A.stamp(15)
        A("s_waitcnt vmcnt(0)\ns_barrier")
        vm.q = []
        for c in range(2):
            dma_w(c); dma_x(c)
            if c < 1: A("s_barrier")
        run_loop(True)
        A.stamp(18)
    A.stamp(2)
    A("s_barrier")
    A(f"""
  s_mul_i32 s48, s6, 43008
  s_lshl_b32 s49, s6, 10
  """)
    for i in range(4):
        if i == 3: A("s_cmp_ge_u32 s6, 4\ns_cbranch_scc1 LA_skipq")
        A(f"s_add_u32 m0, s49, {WQ + 8192*i}")
        A(f"s_add_u32 s51, s48, {344064*i}")
        A("buffer_load_dwordx4 v7, s[16:19], s51 offen lds")
    A.label("LA_skipq")
    A("s_waitcnt vmcnt(3)")
    for s in range(2):
        for j in range(4):
            A(f"v_lshl_or_b32 v{PHI+4*s+j}, v{PH+8*s+2*j+1}, 16, v{PH+8*s+2*j}")
    KB = 64; PA = 72
    for j in range(8): A(f"v_cvt_pk_bf16_f32 v{KB+j}, v{ACK+2*j}, v{ACK+2*j+1}")
    A(f"v_mfma_f32_32x32x16_bf16 v[{PA}:{PA+15}], v[{PHI}:{PHI+3}], v[{KB}:{KB+3}], 0")
    A(f"v_mfma_f32_32x32x16_bf16 v[{PA}:{PA+15}], v[{PHI+4}:{PHI+7}], v[{KB+4}:{KB+7}], v[{PA}:{PA+15}]")
    VB = 12
    A("v_cmp_eq_u32 s[54:55], 28, v3")
    A("v_mov_b32 v2, 0x3f803f80")
    for j in range(8): A(f"v_cvt_pk_bf16_f32 v{VB+j}, v{ACV+2*j}, v{ACV+2*j+1}")
    for j in range(8): A(f"v_cndmask_b32 v{VB+j}, v{VB+j}, v2, s[54:55]")
    OP, OM = 32, 40
    softmax_feats(A, PA, OP, OM, 88)
    A.stamp(3)
    TP, TM = 64, 80
    for (src, dst) in ((OP, TP), (OM, TM)):
        A(f"v_mfma_f32_32x32x16_bf16 v[{dst}:{dst+15}], v[{src}:{src+3}], v[{IDF}:{IDF+3}], 0")
        A(f"v_mfma_f32_32x32x16_bf16 v[{dst}:{dst+15}], v[{src+4}:{src+7}], v[{IDF+4}:{IDF+7}], v[{dst}:{dst+15}]")
    TPp, TMp = 96, 104
    for (src, dst) in ((TP, TPp), (TM, TMp)):
        for j in range(8): A(f"v_cvt_pk_bf16_f32 v{dst+j}, v{src+2*j}, v{src+2*j+1}")
    for (src, dst) in ((TPp, TP), (TMp, TM)):
        A(f"v_mfma_f32_32x32x16_bf16 v[{dst}:{dst+15}], v[{src}:{src+3}], v[{VB}:{VB+3}], 0")
        A(f"v_mfma_f32_32x32x16_bf16 v[{dst}:{dst+15}], v[{src+4}:{src+7}], v[{VB+4}:{VB+7}], v[{dst}:{dst+15}]")
    A(f"""
  v_lshlrev_b32 v2, 4, v1
  s_lshl_b32 s48, s6, 13
  s_add_u32 s48, s48, {RED}
  v_add_u32 v10, s48, v2
  s_lshl_b32 s48, s6, 10
  v_add_u32 v26, s48, v2
  v_add_u32 v11, {RED}, v26
  """)
    for q in range(8): A(f"ds_write_b128 v10, v[{64+4*q}:{64+4*q+3}] offset:{1024*q}")
    A("s_waitcnt lgkmcnt(0)")
    A("s_barrier")
    for ww in range(8):
        r = 64 + 4 * ww
        A(f"ds_read_b128 v[{r}:{r+3}], v11 offset:{8192*ww}")
    A("s_waitcnt lgkmcnt(0)")
    for lvl in (4, 8, 16):
        for b0 in range(64, 96, 2 * lvl):
            for i in (0, 2):
                A(f"v_pk_add_f32 v[{b0+i}:{b0+i+1}], v[{b0+i}:{b0+i+1}], v[{b0+lvl+i}:{b0+lvl+i+1}]")
    A.stamp(4)
    A(f"""
  s_lshl_b32 s49, s7, 16
  s_lshl_b32 s48, s5, 13
  s_add_u32 s48, s48, s49
  s_add_u32 s48, s48, {KVP_OFF}
  s_add_u32 s49, s49, {KVP_OFF}
  buffer_store_dwordx4 v[64:67], v26, s[12:15], s48 offen sc1
  s_waitcnt vmcnt(0)
  s_barrier
  s_cmp_lg_u32 s6, 0
  s_cbranch_scc1 LA_nopub
  """)
    stageF.get_token(A, "LA_tok")
    A(f"""
  s_lshl_b32 s51, s7, 7
  s_add_u32 s51, s51, {stageF.FLKV}
  s_lshl_b32 s54, s5, 2
  s_add_u32 s54, s54, s51
  v_mov_b32 v2, s96
  v_mov_b32 v27, s54
  s_mov_b64 s[56:57], exec
  s_mov_b64 exec, 1
  buffer_store_dword v2, v27, s[12:15], 0 offen sc1
  s_mov_b64 exec, s[56:57]
  v_lshlrev_b32 v27, 2, v1
  v_add_u32 v27, s51, v27
LA_nopub:
  """)
    A.stamp(5)
    stageF.wo_prefetch(A, 0, 10, 11, "LA_nowo")
    A(f"""
  v_lshlrev_b32 v2, 6, v0
  v_cmp_gt_u32 vcc, 448, v0
  s_and_saveexec_b64 s[56:57], vcc
  ds_write_b16 v2, v29 offset:{WQ + 58}
  s_mov_b64 exec, s[56:57]
  s_waitcnt lgkmcnt(0)
  s_barrier
  """)
    AQ = 48
    for i in range(16): A(f"v_mov_b32 v{AQ+i}, 0")
    A(f"v_add_u32 v8, {WQ}, v8")
    def trq(c):
        L = []
        b = FR + 32 * (c & 1)
        L.append(f"s_lshl_b32 s51, s{88+c}, 12")
        L.append(f"v_add_u32 v28, s51, v8")
        for kk in range(4):
            r = b + 4 * kk
            L.append(f"ds_read_b64_tr_b16 v[{r}:{r+1}], v28 offset:{1024*kk}")
            L.append(f"ds_read_b64_tr_b16 v[{r+2}:{r+3}], v28 offset:{1024*kk + 256}")
        return L
    for x in trq(0): A(x)
    for c in range(7):
        A("s_waitcnt lgkmcnt(0)")
        rl = trq(c + 1) if c < 6 else []
        b = FR + 32 * (c & 1)
        mf = []
        for kk in range(4):
            ks = 4 * c + kk
            xr = X + 4 * ks
            mf.append(f"v_mfma_f32_32x32x16_bf16 v[{AQ}:{AQ+15}], v[{b+4*kk}:{b+4*kk+3}], v[{xr}:{xr+3}], v[{AQ}:{AQ+15}]")
        mix(A, mf, rl)
    A.stamp(6)
    for j in range(8): A(f"v_cvt_pk_bf16_f32 v{KB+j}, v{AQ+2*j}, v{AQ+2*j+1}")
    A(f"v_mfma_f32_32x32x16_bf16 v[{PA}:{PA+15}], v[{PHI}:{PHI+3}], v[{KB}:{KB+3}], 0")
    A(f"v_mfma_f32_32x32x16_bf16 v[{PA}:{PA+15}], v[{PHI+4}:{PHI+7}], v[{KB+4}:{KB+7}], v[{PA}:{PA+15}]")
    A(f"""
  v_and_b32 v10, 0xffff0000, v{KB+6}
  v_mul_f32 v10, s47, v10
  v_sub_f32 v10, 0, v10
  v_exp_f32 v10, v10
  v_add_f32 v10, 1.0, v10
  v_rcp_f32 v10, v10
  v_cvt_pk_bf16_f32 v10, v10, v10
  v_lshlrev_b32 v10, 16, v10
  v_lshlrev_b32 v11, 2, v5
  s_cmp_lg_u32 s7, 0
  s_cbranch_scc1 LA_nog
  s_mov_b64 s[56:57], exec
  s_mov_b64 exec, s[52:53]
  s_mov_b32 s48, {G_OFF}
  buffer_store_dword v10, v11, s[12:15], s48 offen sc1
  s_mov_b64 exec, s[56:57]
LA_nog:
  """)
    softmax_feats(A, PA, OP, OM, 88)
    A.stamp(7)
    A("""
  s_cmp_lg_u32 s6, 0
  s_cbranch_scc1 LA_nopoll
  """)
    stageF.poll_flags(A, "LA_poll", 8, 27, sleep=2)
    A("""
LA_nopoll:
  s_barrier
  """)
    A.stamp(8)
    PL = 64
    for pp in range(8):
        A(f"s_add_u32 s48, s49, {8192*pp}")
        A(f"buffer_load_dwordx4 v[{PL+4*pp}:{PL+4*pp+3}], v26, s[12:15], s48 offen sc1")
    A("s_waitcnt vmcnt(0)")
    for lvl in (4, 8, 16):
        for b0 in range(64, 96, 2 * lvl):
            for i in (0, 2):
                A(f"v_pk_add_f32 v[{b0+i}:{b0+i+1}], v[{b0+i}:{b0+i+1}], v[{b0+lvl+i}:{b0+lvl+i+1}]")
    A.stamp(9)
    A(f"""
  v_cvt_pk_bf16_f32 v72, v64, v65
  v_cvt_pk_bf16_f32 v73, v66, v67
  v_lshlrev_b32 v2, 4, v1
  s_lshr_b32 s48, s6, 1
  s_lshl_b32 s48, s48, 10
  s_and_b32 s51, s6, 1
  s_lshl_b32 s51, s51, 3
  s_add_u32 s48, s48, s51
  s_add_u32 s48, s48, {KVF}
  v_add_u32 v10, s48, v2
  ds_write_b64 v10, v[72:73]
  v_add_u32 v2, {KVF}, v2
  s_waitcnt lgkmcnt(0)
  s_barrier
  """)
    for fi in range(4): A(f"ds_read_b128 v[{80+4*fi}:{80+4*fi+3}], v2 offset:{1024*fi}")
    NUM = 96
    A("s_waitcnt lgkmcnt(0)")
    srcs = [OP, OP + 4, OM, OM + 4]
    for fi in range(4):
        c = "0" if fi == 0 else f"v[{NUM}:{NUM+15}]"
        A(f"v_mfma_f32_32x32x16_bf16 v[{NUM}:{NUM+15}], v[{80+4*fi}:{80+4*fi+3}], v[{srcs[fi]}:{srcs[fi]+3}], {c}")
    NBr = 112
    for j in range(8): A(f"v_cvt_pk_bf16_f32 v{NBr+j}, v{NUM+2*j}, v{NUM+2*j+1}")
    A(f"""
  v_lshlrev_b32 v10, 16, v{NBr+6}
  v_mov_b32 v11, v10
  v_permlane32_swap_b32 v11, v10
  v_add_f32 v10, 0x358637bd, v10
  v_cvt_pk_bf16_f32 v10, v10, v10
  v_lshlrev_b32 v10, 16, v10
  v_rcp_f32 v10, v10
  """)
    for j in range(8):
        A(f"v_lshlrev_b32 v{NUM+2*j}, 16, v{NBr+j}")
        A(f"v_and_b32 v{NUM+2*j+1}, 0xffff0000, v{NBr+j}")
    for j in range(8):
        A(f"v_pk_mul_f32 v[{NUM+2*j}:{NUM+2*j+1}], v[{NUM+2*j}:{NUM+2*j+1}], v[10:11] op_sel:[0,0] op_sel_hi:[1,0]")
    for j in range(8): A(f"v_cvt_pk_bf16_f32 v{NBr+j}, v{NUM+2*j}, v{NUM+2*j+1}")
    A(f"""
  v_cndmask_b32 v{NBr+6}, v{NBr+6}, 0, s[52:53]
  v_cndmask_b32 v{NBr+7}, v{NBr+7}, 0, s[52:53]
  v_lshlrev_b32 v2, 6, v3
  v_lshl_add_u32 v2, v4, 3, v2
  s_lshl_b32 s48, s6, 11
  s_add_u32 s48, s48, {RED}
  v_add_u32 v2, s48, v2
  v_lshlrev_b32 v11, 4, v1
  v_add_u32 v10, s48, v11
  """)
    for q in range(4):
        A(f"ds_write_b64 v2, v[{NBr+2*q}:{NBr+2*q+1}] offset:{16*q}")
    A(f"""
  s_lshl_b32 s48, s7, 17
  s_lshl_b32 s51, s43, 6
  s_add_u32 s48, s48, s51
  s_add_u32 s48, s48, {O_OFF}
  s_waitcnt lgkmcnt(0)
  ds_read_b128 v[96:99], v10
  ds_read_b128 v[100:103], v10 offset:1024
  s_waitcnt lgkmcnt(1)
  buffer_store_dwordx4 v[96:99], v11, s[12:15], s48 offen sc1
  s_waitcnt lgkmcnt(0)
  buffer_store_dwordx4 v[100:103], v11, s[12:15], s48 offen offset:1024 sc1
  """)
    A.stamp(10)
    A(f"""
  s_waitcnt vmcnt(0)
  s_barrier
  s_cmp_lg_u32 s6, 0
  s_cbranch_scc1 LA_nopub2
  v_lshlrev_b32 v27, 10, v1
  s_lshl_b32 s51, s5, 7
  s_lshl_b32 s54, s7, 2
  s_add_u32 s51, s51, s54
  s_add_u32 s51, s51, {stageF.FLF}
  v_mov_b32 v2, s96
  s_mov_b64 s[56:57], exec
  s_mov_b64 exec, 0xfffffff
  buffer_store_dword v2, v27, s[12:15], s51 offen sc1
  s_mov_b64 exec, s[56:57]
LA_nopub2:
  """)
    A.stamp(12)
    stageF.stage_F(A, 0, 57344, 122880, "A")
```

```python
from asmlib import Asm
import stageF

LOG2E = 0x3FB8AA3B
INV2PI = 0x3E22F983
XT_OFF = 0x000000
YT_OFF = 0x200000
KVP_OFF = 0x400000
O_OFF = 0x600000
G_OFF = 0x800000
WS_SIZE = 0x1000000
STG = 8704
CH_REG = 2 * STG
CPY = 4160
U_BASE = 4 * CH_REG
U_SZ = 4608
EX_BASE = U_BASE + 4 * U_SZ
B_LDS = EX_BASE + 8 * 2048

def interleave(*lists):
    out = []; idx = [0] * len(lists)
    while any(idx[i] < len(lists[i]) for i in range(len(lists))):
        for i, l in enumerate(lists):
            if idx[i] < len(l):
                out.append(l[idx[i]]); idx[i] += 1
    return out

def cmul(dst, z, w, t, conj=False):
    a = [f"v_pk_mul_f32 v[{t}:{t+1}], v[{z}:{z+1}], v[{w}:{w+1}] op_sel:[0,0] op_sel_hi:[1,0]"]
    if not conj:
        a.append(f"v_pk_fma_f32 v[{dst}:{dst+1}], v[{z}:{z+1}], v[{w}:{w+1}], v[{t}:{t+1}] op_sel:[1,1,0] op_sel_hi:[0,1,1] neg_lo:[1,0,0]")
    else:
        a.append(f"v_pk_fma_f32 v[{dst}:{dst+1}], v[{z}:{z+1}], v[{w}:{w+1}], v[{t}:{t+1}] op_sel:[1,1,0] op_sel_hi:[0,1,1] neg_hi:[1,0,0]")
    return a

def role_B(A, ABASE=128):
    A.comment("================= ROLE B (v2) =================")
    A.stamp(0)
    A(f"""
  s_sub_u32 s3, s2, {ABASE}
  s_load_dwordx2 s[40:41], s[0:1], 8
  s_and_b32 s4, s3, 7
  s_and_b32 s5, s3, 1
  s_mul_i32 s4, s4, 14
  s_lshr_b32 s3, s3, 3
  s_mul_i32 s43, s3, 86016
  s_mul_i32 s5, s5, 384
  s_add_u32 s43, s43, s5
  s_add_u32 s3, s3, s4
  v_mul_u32_u24 v2, 683, v0
  v_lshrrev_b32 v2, 13, v2
  v_mul_u32_u24 v3, 12, v2
  v_sub_u32 v3, v0, v3
  v_lshrrev_b32 v4, 2, v3
  v_and_b32 v3, 3, v3
  v_mul_u32_u24 v2, 2688, v2
  v_mul_u32_u24 v4, 896, v4
  v_lshl_add_u32 v2, v3, 7, v2
  v_add3_u32 v126, v2, v4, s43
  s_load_dwordx8 s[16:23], s[0:1], 40
  s_load_dwordx4 s[24:27], s[0:1], 72
  s_load_dwordx2 s[28:29], s[0:1], 88
  s_load_dwordx4 s[32:35], s[0:1], 120
  s_load_dwordx2 s[36:37], s[0:1], 0
  v_and_b32 v1, 63, v0
  v_lshrrev_b32 v2, 6, v0
  s_nop 0
  v_readfirstlane_b32 s6, v2
  """)
    A("""
  s_lshr_b32 s38, s6, 1
  s_and_b32 s39, s6, 1
  s_lshl_b32 s7, s3, 2
  s_add_u32 s7, s7, s38
  s_mul_i32 s42, s6, %d
  """ % STG)
    A("""
  v_lshlrev_b32 v5, 2, v1
  s_lshl_b32 s44, s7, 9
  s_lshl_b32 s45, s39, 8
  s_add_u32 s44, s44, s45
  v_add_u32 v5, s44, v5
  s_lshl_b32 s45, s7, 1
  v_mov_b32 v6, s45
  v_mul_u32_u24 v3, 3584, v0
  s_lshl_b32 s45, s3, 3
  s_waitcnt lgkmcnt(0)
  s_mov_b32 s8, s36
  s_mov_b32 s9, s37
  s_mov_b32 s10, 1835008
  s_mov_b32 s11, 0x00020000
  s_mov_b32 s12, s34
  s_mov_b32 s13, s35
  s_mov_b32 s14, %d
  s_mov_b32 s15, 0x00020000
  v_cmp_gt_u32 vcc, 384, v0
  s_and_saveexec_b64 s[50:51], vcc
  s_cbranch_execz LB_nowpf
  global_load_dword v125, v126, s[40:41]
LB_nowpf:
  s_mov_b64 exec, s[50:51]
  global_load_dword v16, v5, s[16:17]
  global_load_dword v17, v5, s[18:19]
  global_load_dword v18, v5, s[20:21]
  global_load_dword v19, v5, s[22:23]
  global_load_dword v20, v5, s[24:25]
  global_load_dword v21, v5, s[26:27]
  global_load_ushort v22, v6, s[28:29]
  buffer_load_dwordx2 v[80:81], v3, s[8:11], s45 offen
  buffer_load_dwordx2 v[82:83], v3, s[8:11], s45 offen offset:896
  buffer_load_dwordx2 v[84:85], v3, s[8:11], s45 offen offset:1792
  buffer_load_dwordx2 v[86:87], v3, s[8:11], s45 offen offset:2688
  """ % WS_SIZE)
    A("""
  v_lshlrev_b32 v11, 2, v1
  v_add_u32 v11, s42, v11
  v_and_b32 v12, 31, v1
  v_mul_u32_u24 v12, 272, v12
  v_lshrrev_b32 v13, 5, v1
  v_lshl_add_u32 v12, v13, 4, v12
  v_add_u32 v12, s42, v12
  s_mov_b32 s47, 0x%x
  s_mov_b32 s48, 0x%x
  s_waitcnt vmcnt(4)
  """ % (LOG2E, INV2PI))
    A.stamp(2)
    A("""
  v_lshlrev_b32 v22, 16, v22
  v_mul_f32 v22, s47, v22
  v_exp_f32 v22, v22
  v_cvt_pk_bf16_f32 v22, v22, v22
  v_lshlrev_b32 v22, 16, v22
  """)
    ACC = 96
    for i in range(16): A(f"v_mov_b32 v{ACC+i}, 0")
    A("s_mov_b32 s49, 0")
    A.label("LB_pass")
    ar, th, dbr, dbi = 32, 33, 34, 35
    W, E, E2, E4, E8, G = 36, 38, 40, 42, 44, 46
    t0, t1, t2 = 48, 50, 52
    Z1, Z2, Z3, Z4 = 54, 56, 58, 60
    P = 62
    c1, c2, c3, c4 = 64, 65, 66, 67
    AF = 112
    BF = 144
    A(f"""
  v_lshlrev_b32 v{ar}, 16, v16
  v_lshlrev_b32 v{th}, 16, v17
  v_lshlrev_b32 v{dbr}, 16, v18
  v_lshlrev_b32 v{dbi}, 16, v19
  v_lshlrev_b32 v{t0}, 16, v20
  v_lshlrev_b32 v{t0+1}, 16, v21
  v_mul_f32 v{ar}, v{ar}, v22
  v_mul_f32 v{th}, v{th}, v22
  v_mul_f32 v{dbr}, v{dbr}, v22
  v_mul_f32 v{dbi}, v{dbi}, v22
  v_mul_f32 v{ar}, s47, v{ar}
  v_mul_f32 v{th}, s48, v{th}
  """)
    A("\n".join(cmul(W, t0, dbr, t1)))
    def cis(dst, l, m, ph):
        return [f"v_mul_f32 v{m}, {l}, v{ar}" if isinstance(l, str) else f"v_mul_f32 v{m}, {float(l)}, v{ar}",
                f"v_mul_f32 v{ph}, {l}, v{th}" if isinstance(l, str) else f"v_mul_f32 v{ph}, {float(l)}, v{th}",
                f"v_exp_f32 v{m}, v{m}",
                f"v_fract_f32 v{ph}, v{ph}",
                f"v_cos_f32 v{dst}, v{ph}",
                f"v_sin_f32 v{dst+1}, v{ph}",
                f"v_pk_mul_f32 v[{dst}:{dst+1}], v[{dst}:{dst+1}], v[{m}:{m+1}] op_sel:[0,0] op_sel_hi:[1,0]"]
    import struct
    fl = lambda x: "0x%08x" % struct.unpack('<I', struct.pack('<f', x))[0]
    l1 = cis(E, fl(1.0), t0, t0+1); l8 = cis(E8, fl(8.0), t1, t1+1); l256 = cis(G, fl(256.0), t2, t2+1)
    for x in interleave(l1, l8, l256): A(x)
    A("\n".join(cmul(E2, E, E, t0)))
    A("\n".join(cmul(E4, E2, E2, t0)))
    def wr(z, rows, tmp):
        o = [f"v_cvt_pk_bf16_f32 v{tmp}, v{z}, v{z+1}"]
        for r in rows: o.append(f"ds_write_b32 v11, v{tmp} offset:{r*272}")
        return o
    ch1 = wr(W, [0], c1)
    prev = W
    for p in range(1, 8):
        ch1 += cmul(Z1, prev, E, t0) + wr(Z1, [p], c1); prev = Z1
    P256, P512, P768, PX = 68, 70, 72, 74
    pre = cmul(P256, W, G, t1) + cmul(P512, P256, G, t1) + cmul(P768, P512, G, t1)
    ch2 = wr(P256, [8], c2) + cmul(Z2, P256, E2, t1) + wr(Z2, [9], c2) + cmul(Z2, Z2, E2, t1) + wr(Z2, [10, 12], c2) \
        + cmul(Z2, Z2, E2, t1) + wr(Z2, [13], c2) + cmul(Z2, Z2, E2, t1) + wr(Z2, [14], c2)
    ch3 = wr(P512, [16], c3) + cmul(Z3, P512, E4, t2) + wr(Z3, [17, 20], c3) + cmul(Z3, Z3, E4, t2) + wr(Z3, [21], c3) \
        + wr(P768, [18], c3) + cmul(Z3, P768, E4, t2) + wr(Z3, [19, 22], c3) + cmul(Z3, Z3, E4, t2) + wr(Z3, [23], c3)
    t3 = 76
    ch4 = []
    prevp = P768
    for i in range(4):
        ch4 += cmul(PX, prevp, G, t3) + wr(PX, [24 + i], c4) + cmul(Z4, PX, E8, t3) + wr(Z4, [28 + i], c4)
        prevp = PX
    for x in pre: A(x)
    for x in interleave(ch1, ch2, ch3, ch4): A(x)
    A("s_waitcnt lgkmcnt(0)")
    for s in range(8): A(f"ds_read_b128 v[{AF+4*s}:{AF+4*s+3}], v12 offset:{32*s}")
    E16, E32, E64 = 36, 38, 40
    A("\n".join(cmul(E16, E8, E8, t0)))
    A("\n".join(cmul(E32, E16, E16, t0)))
    A("\n".join(cmul(E64, E32, E32, t0)))
    S8, S16, S24 = 42, 46, 68
    A("\n".join(cmul(S16, E64, E64, t0)))
    A("\n".join(cmul(S24, S16, E64, t0)))
    A(f"v_mov_b32 v{S8}, v{E64}")
    A(f"v_xor_b32 v{S8+1}, 0x80000000, v{E64+1}")
    A(f"v_xor_b32 v{S16+1}, 0x80000000, v{S16+1}")
    A(f"v_xor_b32 v{S24+1}, 0x80000000, v{S24+1}")
    A(f"v_mov_b32 v{Z1}, 1.0")
    A(f"v_mov_b32 v{Z1+1}, 0")
    A("s_waitcnt lgkmcnt(0)")
    ys = []
    for ci, (z, start, tt, cc) in enumerate([(Z1, Z1, t0, c1), (Z2, S8, t1, c2), (Z3, S16, t2, c3), (Z4, S24, t3, c4)]):
        l = wr(start, [8 * ci], cc)
        prev = start
        for j in range(1, 8):
            l += cmul(z, prev, E8, tt, conj=True) + wr(z, [8 * ci + j], cc); prev = z
        ys.append(l)
    for x in interleave(*ys): A(x)
    A("s_waitcnt lgkmcnt(0)")
    for s in range(8): A(f"ds_read_b128 v[{BF+4*s}:{BF+4*s+3}], v12 offset:{32*s}")
    for s in range(8):
        A(f"s_waitcnt lgkmcnt({7-s})")
        A(f"v_mfma_f32_32x32x16_bf16 v[{ACC}:{ACC+15}], v[{AF+4*s}:{AF+4*s+3}], v[{BF+4*s}:{BF+4*s+3}], v[{ACC}:{ACC+15}]")
    for i in range(16, 22): A(f"v_lshrrev_b32 v{i}, 16, v{i}")
    A("""
  s_add_u32 s49, s49, 1
  s_cmp_lt_u32 s49, 2
  s_cbranch_scc1 LB_pass
  """)
    A.stamp(3)
    A(f"""
  v_lshlrev_b32 v2, 4, v1
  s_lshl_b32 s45, s6, 11
  s_add_u32 s45, s45, {EX_BASE}
  v_add_u32 v3, s45, v2
  s_xor_b32 s46, s6, 1
  s_lshl_b32 s46, s46, 11
  s_add_u32 s46, s46, {EX_BASE}
  v_add_u32 v4, s46, v2
  s_nop 7
  s_nop 7
  s_cmp_eq_u32 s39, 0
  s_cbranch_scc1 LB_ex0
  ds_write_b128 v3, v[{ACC}:{ACC+3}]
  ds_write_b128 v3, v[{ACC+4}:{ACC+7}] offset:1024
  s_branch LB_ex1
LB_ex0:
  ds_write_b128 v3, v[{ACC+8}:{ACC+11}]
  ds_write_b128 v3, v[{ACC+12}:{ACC+15}] offset:1024
LB_ex1:
  s_waitcnt lgkmcnt(0)
  s_barrier
  """)
    A.stamp(4)
    A(f"""
  ds_read_b128 v[24:27], v4
  ds_read_b128 v[28:31], v4 offset:1024
  s_mov_b32 s45, 0x05040100
  s_mov_b32 s46, 0x07060302
  s_waitcnt vmcnt(0)
  v_perm_b32 v88, v82, v80, s45
  v_perm_b32 v89, v86, v84, s45
  v_perm_b32 v90, v82, v80, s46
  v_perm_b32 v91, v86, v84, s46
  v_perm_b32 v92, v83, v81, s45
  v_perm_b32 v93, v87, v85, s45
  v_perm_b32 v94, v83, v81, s46
  v_perm_b32 v95, v87, v85, s46
  v_lshlrev_b32 v8, 3, v0
  v_add_u32 v8, {U_BASE + 512}, v8
  ds_write_b64 v8, v[88:89]
  ds_write_b64 v8, v[90:91] offset:{U_SZ}
  ds_write_b64 v8, v[92:93] offset:{2*U_SZ}
  ds_write_b64 v8, v[94:95] offset:{3*U_SZ}
  v_and_b32 v9, 31, v1
  v_lshrrev_b32 v10, 5, v1
  s_mul_i32 s46, s38, {CH_REG}
  v_lshlrev_b32 v13, 4, v9
  v_lshl_add_u32 v13, v10, 3, v13
  v_sub_u32 v13, {2*2044}, v13
  v_add_u32 v13, s46, v13
  v_cmp_eq_u32 s[52:53], 1, v10
  s_cmp_eq_u32 s39, 1
  s_waitcnt lgkmcnt(4)
  s_cbranch_scc1 LB_w1
  """)
    for i in range(8): A(f"v_add_f32 v{24+i}, v{24+i}, v{ACC+i}")
    A(f"""
  v_cvt_pk_bf16_f32 v32, v27, v26
  v_cvt_pk_bf16_f32 v33, v25, v24
  v_cvt_pk_bf16_f32 v34, v30, v29
  v_cvt_pk_bf16_f32 v35, v28, v28
  v_subrev_u32 v14, 512, v13
  ds_write_b64 v13, v[32:33]
  ds_write_b64 v14, v[34:35]
  v_mov_b32 v36, 0
  v_mov_b32 v37, 0
  v_lshlrev_b32 v14, 3, v1
  v_add_u32 v14, s46, v14
  s_mov_b64 s[50:51], exec
  s_mov_b64 exec, 0xff
  ds_write_b64 v14, v[36:37] offset:4096
  s_mov_b64 exec, s[50:51]
  s_branch LB_w2
LB_w1:
  """)
    for i in range(8): A(f"v_add_f32 v{24+i}, v{24+i}, v{ACC+8+i}")
    A("""
  v_cndmask_b32 v32, v24, v25, s[52:53]
  v_cndmask_b32 v33, v26, v27, s[52:53]
  v_cvt_pk_bf16_f32 v34, v25, v32
  v_cvt_pk_bf16_f32 v35, v24, v24
  v_cvt_pk_bf16_f32 v36, v27, v33
  v_cvt_pk_bf16_f32 v37, v26, v26
  v_subrev_u32 v14, 1024, v13
  ds_write_b64 v14, v[34:35]
  v_subrev_u32 v14, 1536, v13
  ds_write_b64 v14, v[36:37]
  v_and_b32 v14, 1, v9
  v_and_b32 v14, v14, v10
  v_cmp_eq_u32 s[54:55], 1, v14
  """)
    for i in range(4):
        f = 28 + i
        A(f"""
  v_mov_b32 v38, v{f}
  v_mov_b32 v39, v{f}
  v_permlane32_swap_b32 v38, v39
  v_cndmask_b32 v38, v38, v{f}, s[54:55]
  v_cvt_pk_bf16_f32 v{40+2*i}, v{f}, v{f}
  v_cvt_pk_bf16_f32 v{41+2*i}, v{f}, v38
  v_subrev_u32 v14, {2048 + 512*i}, v13
  ds_write_b64 v14, v[{40+2*i}:{41+2*i}]
  """)
    A.label("LB_w2")
    A(f"""
  v_mov_b32 v36, 0
  v_mov_b32 v37, 0
  v_mov_b32 v38, 0
  v_mov_b32 v39, 0
  v_lshrrev_b32 v5, 5, v0
  v_and_b32 v6, 31, v0
  v_mul_u32_u24 v14, {U_SZ}, v5
  v_lshl_add_u32 v14, v6, 4, v14
  v_add_u32 v14, {U_BASE}, v14
  v_cmp_gt_u32 vcc, 128, v0
  s_and_saveexec_b64 s[50:51], vcc
  ds_write_b128 v14, v[36:39]
  s_mov_b64 exec, s[50:51]
  s_waitcnt lgkmcnt(0)
  s_barrier
  """)
    A.stamp(5)
    stageF.wo_prefetch(A, 104448, 46, 47, "LB_nowo")
    A("""
  v_lshlrev_b32 v46, 3, v1
  v_add_u32 v46, 161792, v46
  ds_write_b64 v46, v[36:37]
  """)
    A(f"""
  s_lshl_b32 s45, s39, 10
  s_add_u32 s45, s45, s46
  v_lshlrev_b32 v14, 4, v1
  v_add_u32 v14, s45, v14
  ds_read_b128 v[24:27], v14
  ds_read_b64 v[28:29], v14 offset:16
  ds_read_b128 v[40:43], v14 offset:2048
  ds_read_b64 v[44:45], v14 offset:2064
  v_and_b32 v15, 1, v1
  v_lshlrev_b32 v15, 4, v15
  v_add_u32 v15, s46, v15
  ds_write_b128 v15, v[36:39] offset:{4096 + CPY}
  ds_write_b128 v15, v[36:39] offset:{4096 + 2*CPY}
  ds_write_b128 v15, v[36:39] offset:{4096 + 3*CPY}
  """)
    for (d, off, wait) in ((24, 0, 5), (40, 2048, 3)):
        A(f"s_waitcnt lgkmcnt({wait})")
        o1, o3 = 48, 52
        for k in range(4): A(f"v_alignbit_b32 v{o1+k}, v{d+k+1}, v{d+k}, 16")
        for k in range(4): A(f"v_alignbit_b32 v{o3+k}, v{d+k+2}, v{d+k+1}, 16")
        A(f"v_mov_b32 v56, v{d+1}\nv_mov_b32 v57, v{d+2}\nv_mov_b32 v58, v{d+3}\nv_mov_b32 v59, v{d+4}")
        A(f"ds_write_b128 v14, v[{o1}:{o1+3}] offset:{off + CPY}")
        A(f"ds_write_b128 v14, v[56:59] offset:{off + 2*CPY}")
        A(f"ds_write_b128 v14, v[{o3}:{o3+3}] offset:{off + 3*CPY}")
        A("s_nop 1")
    A(f"""
  v_and_b32 v2, 15, v1
  v_lshrrev_b32 v3, 4, v1
  v_and_b32 v4, 3, v2
  v_sub_u32 v4, 3, v4
  v_mul_u32_u24 v4, {CPY}, v4
  v_lshrrev_b32 v5, 2, v2
  v_lshlrev_b32 v5, 3, v5
  v_lshlrev_b32 v6, 4, v3
  v_sub_u32 v6, v6, v5
  v_add_u32 v6, {2*2028 - 64*63}, v6
  v_add3_u32 v4, v4, v6, s46
  s_mul_i32 s45, s38, {U_SZ}
  v_lshlrev_b32 v5, 5, v2
  v_lshl_add_u32 v5, v3, 4, v5
  v_add_u32 v5, {U_BASE + 32}, v5
  v_add_u32 v5, s45, v5
  v_lshlrev_b32 v6, 5, v2
  v_lshl_add_u32 v6, v3, 3, v6
  s_lshl_b32 s45, s7, 12
  s_add_u32 s45, s45, {YT_OFF}
  s_waitcnt lgkmcnt(0)
  s_barrier
  """)
    A.stamp(6)
    A("""
  s_cmp_eq_u32 s39, 1
  s_cbranch_scc1 LB_convB
  """)
    conv(A, [7, 6, 2], "A")
    A("s_branch LB_end")
    A.label("LB_convB")
    conv(A, [5, 4, 3, 1, 0], "B")
    A.label("LB_end")
    A.stamp(7)
    A(f"""
  s_waitcnt vmcnt(0)
  s_barrier
  s_cmp_lg_u32 s6, 0
  s_cbranch_scc1 LB_nopub2
  """)
    stageF.get_token(A, "LB_tok")
    A(f"""
  s_lshr_b32 s51, s3, 4
  s_lshl_b32 s51, s51, 12
  s_and_b32 s54, s3, 15
  s_lshl_b32 s54, s54, 2
  s_add_u32 s51, s51, s54
  s_add_u32 s51, s51, {stageF.FLF + 64}
  v_and_b32 v27, 3, v1
  v_lshlrev_b32 v27, 10, v27
  v_lshrrev_b32 v16, 2, v1
  v_lshl_add_u32 v27, v16, 7, v27
  v_mov_b32 v2, s96
  s_mov_b64 s[56:57], exec
  s_mov_b32 exec_hi, 0
  buffer_store_dword v2, v27, s[12:15], s51 offen sc1
  s_mov_b64 exec, s[56:57]
LB_nopub2:
  """)
    A.stamp(12)
    import os
    if os.environ.get("BNOF"): A("s_sleep 127\ns_sleep 127\ns_sleep 127")
    stageF.stage_F(A, 104448, 0, 65536, "B")

def conv(A, ns, tag):
    kmax = max(ns)
    ACC = {n: 16 + 4 * i for i, n in enumerate(ns)}
    for n in ns:
        for r in range(4): A(f"v_mov_b32 v{ACC[n]+r}, 0")
    BSET = [40, 72]
    APOOL = [104 + 4 * i for i in range(6)]
    loads = []
    mf = []
    seq = []
    lid = 0
    loadinfo = {}
    order = []
    apool_i = 0
    for D in range(8):
        bid = {}
        for k in range(kmax + 1):
            m = 8 * k + D
            areg = APOOL[apool_i % len(APOOL)]; apool_i += 1
            loadinfo[lid] = ('A', areg, 64 * (63 - m)); aid = lid; lid += 1
            need_first = True
            for n in sorted(ns, reverse=True):
                if k > n: continue
                j = n - k
                if j not in bid:
                    sigma = 8 * j - D
                    loadinfo[lid] = ('B', BSET[D & 1] + 4 * j, 64 * (sigma + 7)); bid[j] = lid; lid += 1
                order.append((ACC[n], aid, bid[j]))
    first = {}
    for i, (acc, a, b) in enumerate(order):
        first.setdefault(a, i); first.setdefault(b, i)
    lseq = sorted(loadinfo, key=lambda x: (first[x], x))
    ninstr = {x: (2 if loadinfo[x][0] == 'A' else 1) for x in loadinfo}
    lastuse = {}
    for i, (acc, a, b) in enumerate(order):
        lastuse[a] = i; lastuse[b] = i
    prev_same = {}
    seen = {}
    for x in lseq:
        reg = loadinfo[x][1]
        prev_same[x] = seen.get(reg)
        seen[reg] = x
    issued = []
    li = 0
    LOOK = 12
    def outstanding_after(x):
        idx = issued.index(x)
        return sum(ninstr[y] for y in issued[idx+1:])
    done_upto = -1
    for i, (acc, a, b) in enumerate(order):
        while li < len(lseq):
            x = lseq[li]
            ps = prev_same[x]
            if ps is not None and lastuse[ps] >= i: break
            out = sum(ninstr[y] for y in issued[done_upto+1:])
            if out + ninstr[x] > LOOK and first[x] > i: break
            kind, reg, off = loadinfo[x]
            if kind == 'A':
                A(f"ds_read_b64 v[{reg}:{reg+1}], v4 offset:{off}")
                A(f"ds_read_b64 v[{reg+2}:{reg+3}], v4 offset:{off+8}")
            else:
                A(f"ds_read_b128 v[{reg}:{reg+3}], v5 offset:{off}")
            issued.append(x); li += 1
        needx = max(issued.index(a), issued.index(b))
        if needx > done_upto:
            A(f"s_waitcnt lgkmcnt({outstanding_after(issued[needx])})")
            done_upto = needx
        ar = loadinfo[a][1]; br = loadinfo[b][1]
        A(f"v_mfma_f32_16x16x32_bf16 v[{acc}:{acc+3}], v[{ar}:{ar+3}], v[{br}:{br+3}], v[{acc}:{acc+3}]")
    for n in ns:
        a = ACC[n]
        A(f"v_cvt_pk_bf16_f32 v{a}, v{a}, v{a+1}")
        A(f"v_cvt_pk_bf16_f32 v{a+1}, v{a+2}, v{a+3}")
        A(f"buffer_store_dwordx2 v[{a}:{a+1}], v6, s[12:15], s45 offen offset:{512*n} sc1")
```

```python
from roleB import YT_OFF, O_OFF, G_OFF, WS_SIZE
FLF = 0x900000
FLKV = 0x910000

def get_token(A, lab):
    A(f"""
  v_mov_b32 v16, 0
  s_mov_b32 s51, 0
{lab}:
  global_load_dword v2, v16, s[32:33] sc1
  s_waitcnt vmcnt(0)
  v_readfirstlane_b32 s96, v2
  s_cmp_lg_u32 s96, 0
  s_cbranch_scc1 {lab}_ok
  s_sleep 4
  s_add_u32 s51, s51, 1
  s_cmp_lt_u32 s51, 0x20000
  s_cbranch_scc1 {lab}
{lab}_ok:
  """)

def poll_flags(A, lab, nl, voff, sleep=4):
    mask = (1 << nl) - 1
    A(f"""
  s_mov_b32 s51, 0
  s_mov_b64 s[56:57], exec
  s_mov_b64 exec, {hex(mask)}
{lab}:
  buffer_load_dword v18, v{voff}, s[12:15], 0 offen sc1
  s_waitcnt vmcnt(0)
  v_cmp_ne_u32 vcc, s96, v18
  s_cbranch_vccz {lab}_ok
  s_sleep {sleep}
  s_add_u32 s51, s51, 1
  s_cmp_lt_u32 s51, 0x20000
  s_cbranch_scc1 {lab}
{lab}_ok:
  s_mov_b64 exec, s[56:57]
  """)

def f_setup(A):
    A("""
  s_load_dwordx2 s[80:81], s[0:1], 24
  s_and_b32 s84, s2, 7
  s_lshr_b32 s85, s2, 3
  s_lshl_b32 s84, s84, 2
  s_and_b32 s86, s85, 3
  s_add_u32 s86, s84, s86
  s_lshr_b32 s84, s85, 2
  s_mov_b32 s85, s86
  s_mov_b32 s82, 401408
  s_mov_b32 s83, 0x00020000
  """)

def wo_prefetch(A, WOB, va, vb, lab):
    A(f"""
  s_cmp_ge_u32 s2, 224
  s_cbranch_scc1 {lab}
  v_lshrrev_b32 v{va}, 3, v1
  v_bfe_u32 v{vb}, v1, 4, 1
  v_lshlrev_b32 v{vb}, 2, v{vb}
  v_xor_b32 v{vb}, v{vb}, v1
  v_and_b32 v{vb}, 7, v{vb}
  v_mul_u32_u24 v{va}, 896, v{va}
  v_lshl_add_u32 v{va}, v{vb}, 4, v{va}
  s_lshl_b32 s86, s84, 7
  s_mul_i32 s87, s6, 7168
  s_add_u32 s86, s86, s87
  s_lshl_b32 s87, s6, 10
  """)
    for i in range(7):
        A(f"s_add_u32 m0, s87, {WOB + 8192*i}")
        A(f"s_add_u32 s95, s86, {57344*i}")
        A(f"buffer_load_dwordx4 v{va}, s[80:83], s95 offen lds")
    A(f"{lab}:")

def stage_F(A, WOB, OB, YB, tag):
    L = lambda n: f"LF{tag}_{n}"
    A(f"""
  s_cmp_ge_u32 s2, 224
  s_cbranch_scc1 {L('exit')}
  s_load_dwordx2 s[36:37], s[0:1], 0
  s_load_dwordx2 s[40:41], s[0:1], 96
  s_load_dwordx2 s[38:39], s[0:1], 112
  v_and_b32 v1, 63, v0
  v_and_b32 v3, 31, v1
  v_lshrrev_b32 v4, 5, v1
  s_and_b32 s43, s6, 1
  s_bfe_u32 s44, s6, 0x10001
  s_lshl_b32 s45, s85, 6
  s_lshl_b32 s46, s43, 5
  s_add_u32 s46, s45, s46
  v_add_u32 v5, s46, v3
  v_mul_u32_u24 v6, 896, v5
  v_lshrrev_b32 v8, 3, v1
  v_and_b32 v9, 7, v1
  v_lshrrev_b32 v10, 4, v1
  v_xor_b32 v10, v10, v1
  v_and_b32 v10, 3, v10
  v_lshrrev_b32 v11, 2, v1
  v_lshlrev_b32 v11, 6, v11
  v_lshl_add_u32 v11, v10, 4, v11
  v_bfe_u32 v10, v8, 1, 1
  v_lshlrev_b32 v10, 2, v10
  v_xor_b32 v10, v10, v9
  v_lshlrev_b32 v12, 12, v8
  v_lshl_add_u32 v12, v10, 4, v12
  s_waitcnt lgkmcnt(0)
  s_mov_b32 s8, s36
  s_mov_b32 s9, s37
  s_mov_b32 s10, 1835008
  s_mov_b32 s11, 0x00020000
  s_mov_b32 s20, s38
  s_mov_b32 s21, s39
  s_mov_b32 s22, 1835008
  s_mov_b32 s23, 0x00020000
  """)
    ACC, XV, DV, GV, YV = 128, 144, 152, 160, 162
    A(f"""
  s_lshl_b32 s49, s84, 7
  s_lshl_b32 s51, s44, 6
  s_add_u32 s49, s49, s51
  v_lshl_add_u32 v13, v4, 3, v6
  v_lshlrev_b32 v14, 3, v4
  v_add_u32 v14, s49, v14
  v_lshlrev_b32 v15, 2, v5
  s_cmp_ge_u32 s6, 4
  s_cbranch_scc1 {L('noepi')}
  """)
    for q in range(4):
        A(f"buffer_load_dwordx2 v[{XV+2*q}:{XV+2*q+1}], v13, s[8:11], s49 offen offset:{16*q}")
    for q in range(4):
        A(f"global_load_dwordx2 v[{DV+2*q}:{DV+2*q+1}], v14, s[40:41] offset:{16*q}")
    A(f"{L('noepi')}:")
    A(f"""
  s_cmp_lg_u32 s6, 0
  s_cbranch_scc1 {L('nopoll')}
  s_lshl_b32 s47, s2, 7
  s_add_u32 s47, s47, {FLF}
  v_lshlrev_b32 v16, 2, v1
  v_add_u32 v16, s47, v16
  """)
    poll_flags(A, L('poll'), 32, 16)
    A(f"""
{L('nopoll')}:
  s_barrier
  """)
    A.stamp(13)
    A(f"""
  s_lshl_b32 s47, s6, 18
  s_lshl_b32 s51, s45, 6
  s_add_u32 s47, s47, s51
  s_add_u32 s47, s47, {O_OFF}
  s_lshl_b32 s48, s6, 13
  """)
    for hh_ in range(2):
        for j in range(4):
            A(f"s_add_u32 m0, s48, {OB + 4096*hh_ + 1024*j}")
            A(f"s_add_u32 s51, s47, {131072*hh_ + 1024*j}")
            A("buffer_load_dwordx4 v11, s[12:15], s51 offen sc1 lds")
    A("s_lshl_b32 s48, s6, 10")
    A(f"""
  s_lshl_b32 s47, s84, 18
  s_lshl_b32 s51, s85, 7
  s_add_u32 s47, s47, s51
  s_lshl_b32 s51, s6, 15
  s_add_u32 s47, s47, s51
  s_add_u32 s47, s47, {YT_OFF}
  s_add_u32 m0, s48, {YB}
  s_mov_b32 s51, {G_OFF}
  buffer_load_dwordx4 v12, s[12:15], s47 offen sc1 lds
  buffer_load_dword v{GV}, v15, s[12:15], s51 offen sc1
  """)
    A(f"""
  v_and_b32 v2, 15, v1
  v_lshrrev_b32 v8, 4, v1
  v_lshrrev_b32 v9, 1, v8
  v_lshlrev_b32 v9, 3, v9
  v_lshrrev_b32 v10, 2, v2
  v_add_u32 v9, v9, v10
  v_lshlrev_b32 v9, 7, v9
  v_and_b32 v8, 1, v8
  v_lshl_add_u32 v9, v8, 5, v9
  v_and_b32 v10, 3, v2
  v_lshl_add_u32 v9, v10, 3, v9
  v_bfe_u32 v10, v2, 3, 1
  v_xor_b32 v10, s44, v10
  v_lshl_add_u32 v9, v10, 6, v9
  v_add_u32 v9, {WOB}, v9
  v_lshrrev_b32 v8, 4, v1
  v_lshrrev_b32 v10, 1, v8
  v_lshlrev_b32 v10, 2, v10
  v_lshrrev_b32 v12, 2, v2
  v_add_u32 v10, v10, v12
  s_lshl_b32 s51, s44, 5
  v_add_u32 v10, s51, v10
  v_lshlrev_b32 v10, 7, v10
  v_and_b32 v8, 1, v8
  v_lshl_add_u32 v10, v8, 5, v10
  v_and_b32 v12, 3, v2
  v_lshl_add_u32 v10, v12, 3, v10
  v_bfe_u32 v12, v2, 3, 1
  v_xor_b32 v12, s43, v12
  v_lshl_add_u32 v10, v12, 6, v10
  v_add_u32 v10, {YB}, v10
  v_bfe_u32 v2, v3, 2, 2
  s_lshl_b32 s51, s43, 11
  v_lshlrev_b32 v12, 6, v3
  v_add_u32 v12, s51, v12
  v_add_u32 v12, {OB}, v12
  """)
    OA = [20, 21]
    for kk in range(2):
        A(f"v_add_u32 v{OA[kk]}, {2*kk}, v4")
        A(f"v_xor_b32 v{OA[kk]}, v{OA[kk]}, v2")
        A(f"v_lshl_add_u32 v{OA[kk]}, v{OA[kk]}, 4, v12")
    for i in range(16): A(f"v_mov_b32 v{ACC+i}, 0")
    A(f"""
  s_waitcnt vmcnt(0)
  s_barrier
  s_cmp_ge_u32 s6, 4
  s_cbranch_scc1 {L('exit')}
  """)
    A.stamp(14)
    FR = 176
    def reads(C):
        Lr = []
        b = FR + 32 * (C & 1)
        for kk in range(4):
            h = 2 * C + (kk >> 1); half = kk & 1
            row0 = 28 * h + 16 * half
            Lr.append(f"ds_read_b64_tr_b16 v[{b+4*kk}:{b+4*kk+1}], v9 offset:{128*row0}")
            Lr.append(f"ds_read_b64_tr_b16 v[{b+4*kk+2}:{b+4*kk+3}], v9 offset:{128*row0 + 512}")
            Lr.append(f"ds_read_b128 v[{b+16+4*kk}:{b+16+4*kk+3}], v{OA[half]} offset:{4096*h}")
        return Lr
    from roleA2 import mix
    for x in reads(0): A(x)
    for C in range(8):
        A("s_waitcnt lgkmcnt(0)")
        rl = reads(C + 1) if C < 7 else [f"ds_read_b64_tr_b16 v[{YV+2*q}:{YV+2*q+1}], v10 offset:{1024*q}" for q in range(4)]
        b = FR + 32 * (C & 1)
        mf = [f"v_mfma_f32_32x32x16_bf16 v[{ACC}:{ACC+15}], v[{b+4*kk}:{b+4*kk+3}], v[{b+16+4*kk}:{b+16+4*kk+3}], v[{ACC}:{ACC+15}]" for kk in range(4)]
        mix(A, mf, rl)
    T = 16+16
    A(f"v_sub_f32 v{GV+1}, 1.0, v{GV}")
    A(f"v_cvt_pk_bf16_f32 v{GV+1}, v{GV+1}, v{GV+1}")
    A(f"v_lshlrev_b32 v{GV+1}, 16, v{GV+1}")
    A("s_waitcnt lgkmcnt(0)")
    for q in range(4):
        a = ACC + 4 * q
        t = T + 16 * q
        A(f"v_cvt_pk_bf16_f32 v{t}, v{a}, v{a+1}")
        A(f"v_cvt_pk_bf16_f32 v{t+1}, v{a+2}, v{a+3}")
        for h2 in range(2):
            A(f"v_lshlrev_b32 v{a+2*h2}, 16, v{t+h2}")
            A(f"v_and_b32 v{a+2*h2+1}, 0xffff0000, v{t+h2}")
        for (src, dst) in ((XV + 2 * q, t + 2), (DV + 2 * q, t + 6), (YV + 2 * q, t + 10)):
            for h2 in range(2):
                A(f"v_lshlrev_b32 v{dst+2*h2}, 16, v{src+h2}")
                A(f"v_and_b32 v{dst+2*h2+1}, 0xffff0000, v{src+h2}")
        for h2 in range(2):
            A(f"v_pk_mul_f32 v[{t+2+2*h2}:{t+3+2*h2}], v[{t+2+2*h2}:{t+3+2*h2}], v[{t+6+2*h2}:{t+7+2*h2}]")
        for h2 in range(2):
            A(f"v_cvt_pk_bf16_f32 v{t+6+h2}, v{t+2+2*h2}, v{t+3+2*h2}")
        for h2 in range(2):
            A(f"v_lshlrev_b32 v{t+2+2*h2}, 16, v{t+6+h2}")
            A(f"v_and_b32 v{t+3+2*h2}, 0xffff0000, v{t+6+h2}")
        for h2 in range(2):
            A(f"v_pk_add_f32 v[{t+2+2*h2}:{t+3+2*h2}], v[{t+2+2*h2}:{t+3+2*h2}], v[{t+10+2*h2}:{t+11+2*h2}]")
        for h2 in range(2):
            A(f"v_cvt_pk_bf16_f32 v{t+6+h2}, v{t+2+2*h2}, v{t+3+2*h2}")
        for h2 in range(2):
            A(f"v_lshlrev_b32 v{t+2+2*h2}, 16, v{t+6+h2}")
            A(f"v_and_b32 v{t+3+2*h2}, 0xffff0000, v{t+6+h2}")
        for h2 in range(2):
            A(f"v_pk_mul_f32 v[{a+2*h2}:{a+2*h2+1}], v[{a+2*h2}:{a+2*h2+1}], v[{GV}:{GV+1}] op_sel:[0,0] op_sel_hi:[1,0]")
            A(f"v_pk_mul_f32 v[{t+2+2*h2}:{t+3+2*h2}], v[{t+2+2*h2}:{t+3+2*h2}], v[{GV}:{GV+1}] op_sel:[0,1] op_sel_hi:[1,1]")
        for h2 in range(2):
            A(f"v_cvt_pk_bf16_f32 v{t+6+h2}, v{a+2*h2}, v{a+2*h2+1}")
            A(f"v_cvt_pk_bf16_f32 v{t+8+h2}, v{t+2+2*h2}, v{t+3+2*h2}")
        for h2 in range(2):
            A(f"v_lshlrev_b32 v{a+2*h2}, 16, v{t+6+h2}")
            A(f"v_and_b32 v{a+2*h2+1}, 0xffff0000, v{t+6+h2}")
            A(f"v_lshlrev_b32 v{t+2+2*h2}, 16, v{t+8+h2}")
            A(f"v_and_b32 v{t+3+2*h2}, 0xffff0000, v{t+8+h2}")
        for h2 in range(2):
            A(f"v_pk_add_f32 v[{a+2*h2}:{a+2*h2+1}], v[{a+2*h2}:{a+2*h2+1}], v[{t+2+2*h2}:{t+3+2*h2}]")
        A(f"v_cvt_pk_bf16_f32 v{96+2*q}, v{a}, v{a+1}")
        A(f"v_cvt_pk_bf16_f32 v{97+2*q}, v{a+2}, v{a+3}")
    A("""
  v_permlane32_swap_b32 v96, v98
  v_permlane32_swap_b32 v97, v99
  v_permlane32_swap_b32 v100, v102
  v_permlane32_swap_b32 v101, v103
  v_lshl_add_u32 v13, v4, 4, v6
  s_nop 1
  buffer_store_dwordx4 v[96:99], v13, s[20:23], s49 offen
  buffer_store_dwordx4 v[100:103], v13, s[20:23], s49 offen offset:32
  """)
    A.stamp(15)
    A.dump_stamps(16, "s[12:15]")
    A(f"{L('exit')}:")
    A("s_endpgm")
```

```python
import sys, os
from asmlib import Asm
import roleB2, roleA2, stageF
NAME = "gated_mix__linear_kernel_hedgehog__ssm_conv_s4__prompt"
HEADER = open("cdna_kernels/" + NAME + ".s.ref").read().split("; Override launch geometry")[0]

def kd(name, vgpr, sgpr=96):
    return f""".amdhsa_kernel {name}
  .amdhsa_next_free_vgpr {vgpr}
  .amdhsa_next_free_sgpr {sgpr}
  .amdhsa_accum_offset {vgpr}
  .amdhsa_group_segment_fixed_size 0
  .amdhsa_kernarg_size 136
  .amdhsa_user_sgpr_count 2
  .amdhsa_user_sgpr_kernarg_segment_ptr 1
  .amdhsa_system_sgpr_workgroup_id_x 1
.end_amdhsa_kernel
"""

def build(parts=("A", "B")):
    out = HEADER
    out += "; @launch grid=(240,1,1) block=(512,1,1) lds=163840\n"
    out += '.amdgcn_target "amdgcn-amd-amdhsa--gfx950"\n.text\n'
    A = Asm()
    A(f""".globl {NAME}_kernel
.p2align 8
.type {NAME}_kernel,@function
{NAME}_kernel:
  s_cmp_ge_u32 s2, 240
  s_cbranch_scc1 LK1_exit
""")
    stageF.f_setup(A)
    A("""
  s_cmp_ge_u32 s2, 128
  s_cbranch_scc1 LK1_B
""")
    roleA2.role_A(A)
    A("""LK1_exit:
  s_endpgm
LK1_B:
""")
    roleB2.role_B(A)
    out += A.finalize()
    out += '.section .rodata,"a"\n.p2align 6\n' + kd(NAME + "_kernel", 256, 100)
    return out

if __name__ == "__main__":
    if os.environ.get("PROF"): Asm.PROFILE = True
    open(sys.argv[1], "w").write(build())
```

```python
from roleB import LOG2E, KVP_OFF, O_OFF, G_OFF, WS_SIZE
from roleA import softmax_feats
import stageF
WK = 0
WV = 28672
XR = 57344
WQ = XR + 32768
RED = 0
OST = 122880
GWL = 155648
KVF = 151552

X = 128
FR = 64
ACK = 32
ACV = 48
PHI = 240
IDF = 248

def mix(A, mf, others):
    n = len(mf); k = 0
    for i, m in enumerate(mf):
        A(m)
        tgt = (len(others) * (i + 1) + n - 1) // n
        while k < min(tgt, len(others)):
            A(others[k]); k += 1

class VM:
    def __init__(self): self.q = []
    def add(self, tag): self.q.append(tag)
    def wait(self, tag):
        idx = max(i for i, t in enumerate(self.q) if t == tag)
        n = len(self.q) - 1 - idx
        self.q = self.q[idx+1:]
        return n

def role_A(A, NB=128):
    A.comment("================= ROLE A (v2) =================")
    A.stamp(0)
    A("""
  s_load_dwordx4 s[36:39], s[0:1], 0
  s_load_dwordx2 s[40:41], s[0:1], 16
  s_load_dwordx2 s[24:25], s[0:1], 104
  s_load_dwordx4 s[32:35], s[0:1], 120
  v_and_b32 v1, 63, v0
  v_lshrrev_b32 v2, 6, v0
  s_and_b32 s3, s2, 7
  s_lshr_b32 s4, s2, 3
  v_readfirstlane_b32 s6, v2
  s_lshr_b32 s5, s3, 1
  s_lshl_b32 s5, s5, 1
  s_and_b32 s42, s4, 1
  s_add_u32 s5, s5, s42
  s_and_b32 s7, s3, 1
  s_lshl_b32 s7, s7, 3
  s_lshr_b32 s42, s4, 1
  s_add_u32 s7, s7, s42
  """)
    A("""
  v_and_b32 v3, 31, v1
  v_lshrrev_b32 v4, 5, v1
  s_lshl_b32 s42, s5, 8
  s_lshl_b32 s43, s6, 5
  s_add_u32 s43, s42, s43
  v_add_u32 v5, s43, v3
  v_lshrrev_b32 v7, 3, v1
  v_and_b32 v8, 7, v1
  v_xor_b32 v8, v8, v7
  v_mul_u32_u24 v6, 896, v7
  v_lshl_add_u32 v6, v8, 4, v6
  s_mul_i32 s44, s43, 896
  v_lshrrev_b32 v7, 2, v1
  v_mul_u32_u24 v7, 2688, v7
  v_and_b32 v8, 3, v1
  v_lshl_add_u32 v7, v8, 4, v7
  s_mul_i32 s45, s7, 56
  v_add_u32 v7, s45, v7
  s_and_b32 s46, s6, 3
  s_lshr_b32 s47, s6, 2
  s_mul_i32 s48, s46, 43008
  s_mul_i32 s49, s47, 896
  s_add_u32 s48, s48, s49
  s_add_u32 s48, s48, 896
  s_mul_i32 s49, s47, 28672
  s_lshl_b32 s50, s46, 10
  s_add_u32 s49, s49, s50
  s_lshl_b32 s50, s6, 12
  s_waitcnt lgkmcnt(0)
  s_mov_b32 s8, s36
  s_mov_b32 s9, s37
  s_mov_b32 s10, 1835008
  s_mov_b32 s11, 0x00020000
  s_mov_b32 s12, s34
  s_mov_b32 s13, s35
  s_mov_b32 s14, %d
  s_mov_b32 s15, 0x00020000
  s_mov_b32 s16, s38
  s_mov_b32 s17, s39
  s_mov_b32 s18, 1204224
  s_mov_b32 s19, 0x00020000
  s_mov_b32 s20, s40
  s_mov_b32 s21, s41
  s_mov_b32 s22, 25088
  s_mov_b32 s23, 0x00020000
  """ % WS_SIZE)
    A.stamp(11)
    A("""
  s_or_b32 s51, s2, s6
  s_cmp_lg_u32 s51, 0
  s_cbranch_scc1 LA_notok
  s_memrealtime s[56:57]
  s_waitcnt lgkmcnt(0)
  s_or_b32 s56, s56, 1
  v_mov_b32 v2, s56
  v_mov_b32 v9, 0
  s_mov_b64 s[56:57], exec
  s_mov_b64 exec, 1
  global_store_dword v9, v2, s[32:33] sc1
  s_mov_b64 exec, s[56:57]
LA_notok:
  """)
    vm = VM()
    A("""
  s_lshr_b32 s51, s4, 1
  s_and_b32 s54, s4, 1
  s_mul_i32 s54, s54, 3
  s_add_u32 s51, s51, s54
  s_sub_u32 s54, s51, 7
  s_cmp_ge_u32 s51, 7
  s_cselect_b32 s51, s54, s51
  s_sub_u32 s54, s51, 7
  s_cmp_ge_u32 s51, 7
  s_cselect_b32 s88, s54, s51
  """)
    for j in range(1, 7):
        A(f"s_add_u32 s{88+j}, s{88+j-1}, 1\ns_cmp_ge_u32 s{88+j}, 7\ns_cselect_b32 s{88+j}, 0, s{88+j}")
    def dma_x(c, A=A):
        slot = XR + 32768 * (c % 3)
        for j in range(4):
            A(f"s_add_u32 m0, s50, {slot + 1024*j}\ns_lshl_b32 s55, s{88+c}, 7\ns_add_u32 s55, s55, s44\ns_add_u32 s55, s55, {7168*j}\nbuffer_load_dwordx4 v6, s[8:11], s55 offen lds")
            vm.add(f"x{c}")
    def dma_w(c, A=A):
        A(f"s_lshl_b32 s55, s{88+c}, 12\ns_add_u32 m0, s49, s55\ns_mul_i32 s55, s{88+c}, 172032\ns_add_u32 s55, s55, s48\nbuffer_load_dwordx4 v7, s[16:19], s55 offen lds")
        vm.add(f"w{c}")
    for c in range(2):
        dma_w(c); dma_x(c)
        if c < 1: A("s_barrier")
    A("v_cmp_eq_u32 s[52:53], 1, v4")
    PH = 12
    def small_loads():
        A("""
  v_cmp_lt_u32 vcc, 27, v3
  v_subrev_u32 v10, 4, v3
  s_mul_i32 s51, s7, 1568
  v_cndmask_b32 v10, v3, v10, vcc
  v_lshlrev_b32 v10, 1, v10
  v_mul_u32_u24 v11, 224, v4
  v_add3_u32 v10, v10, v11, s51
  v_cmp_eq_u32 s[52:53], 1, v4
  v_mov_b32 v11, 0x40000000
  v_cndmask_b32 v11, v10, v11, s[52:53]
  """)
        for s in range(2):
            for i in range(8):
                cc = 16 * s + (i & 3) + 8 * (i >> 2)
                vo = 11 if (s == 1 and i >= 4) else 10
                A(f"buffer_load_ushort v{PH+8*s+i}, v{vo}, s[20:23], 0 offen offset:{cc*56}")
                vm.add("phi")
        A("""
  v_min_u32 v30, 447, v0
  v_lshlrev_b32 v30, 1, v30
  global_load_ushort v29, v30, s[24:25]
  """)
        vm.add("gw")
    A("""
  v_mov_b32 v9, 1.0
  v_cndmask_b32 v9, v9, 0, s[52:53]
  s_mov_b32 s47, 0x%x
  s_mov_b32 s46, 0x%x
  v_lshlrev_b32 v31, 2, v4
  v_sub_u32 v31, v3, v31
  """ % (LOG2E, LOG2E))
    for s in range(2):
        for j in range(4):
            i0, i1 = 2 * j, 2 * j + 1
            f0 = 16 * s + (i0 & 3) + 8 * (i0 >> 2); f1 = 16 * s + (i1 & 3) + 8 * (i1 >> 2)
            r = IDF + 4 * s + j
            A(f"v_cmp_eq_u32 vcc, {f0}, v31")
            A(f"v_cmp_eq_u32 s[54:55], {f1}, v31")
            A(f"v_mov_b32 v2, 0x3f80")
            A(f"v_mov_b32 v30, 0x3f800000")
            A(f"v_cndmask_b32 v{r}, 0, v2, vcc")
            A(f"v_cndmask_b32 v{r}, v{r}, v30, s[54:55]")
    A("""
  v_and_b32 v2, 15, v1
  v_lshrrev_b32 v8, 4, v1
  v_lshrrev_b32 v31, 1, v8
  v_lshlrev_b32 v31, 3, v31
  v_lshrrev_b32 v28, 2, v2
  v_add_u32 v31, v31, v28
  v_lshlrev_b32 v31, 6, v31
  v_and_b32 v8, 1, v8
  v_lshl_add_u32 v31, v8, 5, v31
  v_and_b32 v2, 3, v2
  v_lshl_add_u32 v8, v2, 3, v31
  v_and_b32 v2, 7, v3
  v_lshlrev_b32 v28, 7, v3
  v_add_u32 v28, s50, v28
  """)
    XA = [240, 241, 242, 243]
    for kk in range(4):
        A(f"v_xor_b32 v{XA[kk]}, {2*kk}, v4" if False else f"v_add_u32 v{XA[kk]}, {2*kk}, v4")
        A(f"v_xor_b32 v{XA[kk]}, v{XA[kk]}, v2")
        A(f"v_lshl_add_u32 v{XA[kk]}, v{XA[kk]}, 4, v28")
        A(f"v_add_u32 v{XA[kk]}, {XR}, v{XA[kk]}")
    for i in range(16):
        A(f"v_mov_b32 v{ACK+i}, 0")
        A(f"v_mov_b32 v{ACV+i}, 0")
    def reads(c):
        b = FR + 32 * (c & 1)
        slot = 32768 * (c % 3)
        for kk in range(4):
            ks = 4 * c + kk
            A(f"ds_read_b128 v[{X+4*ks}:{X+4*ks+3}], v{XA[kk]} offset:{slot}" if slot < 65536 else "")
            for si, R in enumerate((WK, WV)):
                r = b + 16 * si + 4 * kk
                A(f"ds_read_b64_tr_b16 v[{r}:{r+1}], v8 offset:{R + 1024*ks}")
                A(f"ds_read_b64_tr_b16 v[{r+2}:{r+3}], v8 offset:{R + 1024*ks + 256}")
    def reads2(c):
        b = FR + 32 * (c & 1)
        sl = c % 3
        if sl == 2:
            for kk in range(4): A(f"v_add_u32 v{XA[kk]}, 0x8000, v{XA[kk]}")
        off = 32768 * sl if sl < 2 else 32768
        A(f"s_lshl_b32 s51, s{88+c}, 12")
        A(f"v_add_u32 v28, s51, v8")
        for kk in range(4):
            ks = 4 * c + kk
            A(f"ds_read_b128 v[{X+4*ks}:{X+4*ks+3}], v{XA[kk]} offset:{off}")
            for si, R in enumerate((WK, WV)):
                r = b + 16 * si + 4 * kk
                A(f"ds_read_b64_tr_b16 v[{r}:{r+1}], v28 offset:{R + 1024*kk}")
                A(f"ds_read_b64_tr_b16 v[{r+2}:{r+3}], v28 offset:{R + 1024*kk + 256}")
        if sl == 2:
            for kk in range(4): A(f"v_subrev_u32 v{XA[kk]}, 0x8000, v{XA[kk]}")
    def reads_list(c):
        L = []
        b = FR + 32 * (c & 1)
        sl = c % 3
        if sl == 2:
            for kk in range(4): L.append(f"v_add_u32 v{XA[kk]}, 0x8000, v{XA[kk]}")
        off = 32768 * sl if sl < 2 else 32768
        L.append(f"s_lshl_b32 s51, s{88+c}, 12")
        L.append(f"v_add_u32 v28, s51, v8")
        for kk in range(4):
            ks = 4 * c + kk
            L.append(f"ds_read_b128 v[{X+4*ks}:{X+4*ks+3}], v{XA[kk]} offset:{off}")
            for si, R in enumerate((WK, WV)):
                r = b + 16 * si + 4 * kk
                L.append(f"ds_read_b64_tr_b16 v[{r}:{r+1}], v28 offset:{R + 1024*kk}")
                L.append(f"ds_read_b64_tr_b16 v[{r+2}:{r+3}], v28 offset:{R + 1024*kk + 256}")
        if sl == 2:
            for kk in range(4): L.append(f"v_subrev_u32 v{XA[kk]}, 0x8000, v{XA[kk]}")
        return L
    def run_loop(second):
        pass
        n = vm.wait("x0"); A(f"s_waitcnt vmcnt({n})")
        pass
        A("s_barrier")
        A.stamp(17 if second else 1)
        for x in reads_list(0): A(x)
        dma_w(2); dma_x(2)
        for c in range(7):
            A("s_waitcnt lgkmcnt(0)")
            rl = []
            if c < 6:
                n = vm.wait(f"x{c+1}")
                A(f"s_waitcnt vmcnt({n})")
                A("s_barrier")
                rl = reads_list(c + 1)
            if c + 3 < 7:
                dma_w(c + 3, rl.append); dma_x(c + 3, rl.append)
            if c == 4 and not second: small_loads()
            if c == 5:
                for i in range(4):
                    rl.append(f"s_mul_i32 s55, s6, 43008\ns_add_u32 s55, s55, {344064*i}\ns_lshl_b32 s51, s6, 10\ns_add_u32 m0, s51, {WQ + 8192*i}\nbuffer_load_dwordx4 v7, s[16:19], s55 offen lds")
                    vm.add("wq")
            b = FR + 32 * (c & 1)
            mf = []
            for kk in range(4):
                ks = 4 * c + kk
                xr = X + 4 * ks
                mf.append(f"v_mfma_f32_32x32x16_bf16 v[{ACK}:{ACK+15}], v[{b+4*kk}:{b+4*kk+3}], v[{xr}:{xr+3}], v[{ACK}:{ACK+15}]")
                mf.append(f"v_mfma_f32_32x32x16_bf16 v[{ACV}:{ACV+15}], v[{xr}:{xr+3}], v[{b+16+4*kk}:{b+16+4*kk+3}], v[{ACV}:{ACV+15}]")
            import os
            if os.environ.get("NOMFMA"): mf = []
            if os.environ.get("NOREADS"): rl = []
            if mf: mix(A, mf, rl)
            else:
                for x in rl: A(x)
    run_loop(False)
    import os
    if os.environ.get("TWICE"):
        A.stamp(15)
        A("s_waitcnt vmcnt(0)\ns_barrier")
        vm.q = []
        for c in range(2):
            dma_w(c); dma_x(c)
            if c < 1: A("s_barrier")
        run_loop(True)
        A.stamp(18)
    A.stamp(2)
    class Rec:
        def __init__(self): self.L = []
        def __call__(self, t):
            for ln in t.split("\n"):
                if ln.strip(): self.L.append(ln.strip())
    S = Rec()
    for s_ in range(2):
        for j in range(4):
            S(f"v_lshl_or_b32 v{PHI+4*s_+j}, v{PH+8*s_+2*j+1}, 16, v{PH+8*s_+2*j}")
    KB = 64; PA = 72
    for j in range(8): S(f"v_cvt_pk_bf16_f32 v{KB+j}, v{ACK+2*j}, v{ACK+2*j+1}")
    S(f"v_mfma_f32_32x32x16_bf16 v[{PA}:{PA+15}], v[{PHI}:{PHI+3}], v[{KB}:{KB+3}], 0")
    S(f"v_mfma_f32_32x32x16_bf16 v[{PA}:{PA+15}], v[{PHI+4}:{PHI+7}], v[{KB+4}:{KB+7}], v[{PA}:{PA+15}]")
    VB = 12
    S("v_cmp_eq_u32 s[54:55], 28, v3")
    S("v_mov_b32 v2, 0x3f803f80")
    for j in range(8): S(f"v_cvt_pk_bf16_f32 v{VB+j}, v{ACV+2*j}, v{ACV+2*j+1}")
    for j in range(8): S(f"v_cndmask_b32 v{VB+j}, v{VB+j}, v2, s[54:55]")
    OP, OM = 32, 40
    softmax_feats(S, PA, OP, OM, 88)
    n = vm.wait("gw"); A(f"s_waitcnt vmcnt({n})")
    N1 = 64
    for x in S.L[:N1]: A(x)
    AQ = 48; QF = 32
    A(f"""
  s_waitcnt vmcnt(0)
  v_lshlrev_b32 v30, 1, v0
  v_cmp_gt_u32 vcc, 448, v0
  s_and_saveexec_b64 s[56:57], vcc
  ds_write_b16 v30, v29 offset:{GWL % 65536}
  s_mov_b64 exec, s[56:57]
  v_lshlrev_b32 v30, 4, v4
  v_add_u32 v30, {GWL}, v30
  v_add_u32 v8, {WQ}, v8
  s_mov_b32 s98, 0x20000000
  s_mov_b32 s99, 0x20000000
  s_waitcnt lgkmcnt(0)
  s_barrier
  """.replace(f"ds_write_b16 v30, v29 offset:{GWL % 65536}", f"v_add_u32 v30, {GWL}, v30\n  ds_write_b16 v30, v29"))
    stageF.token_issue(A, 31)
    for i in range(16): A(f"v_mov_b32 v{AQ+i}, 0")
    def qread(ks):
        c, kk = ks >> 2, ks & 3
        L = []
        if kk == 0:
            L += [f"s_lshl_b32 s51, s{88+c}, 12", "v_add_u32 v28, s51, v8", f"s_lshl_b32 s51, s{88+c}, 7", "v_add_u32 v29, s51, v30"]
        r = QF + 4 * kk
        L.append(f"ds_read_b64_tr_b16 v[{r}:{r+1}], v28 offset:{1024*kk}")
        L.append(f"ds_read_b64_tr_b16 v[{r+2}:{r+3}], v28 offset:{1024*kk + 256}")
        L.append(f"s_mov_b64 exec, s[98:99]\nds_read_b128 v[{r}:{r+3}], v29 offset:{32*kk}\ns_mov_b64 exec, -1")
        return L
    rest = S.L[N1:]
    body, tail = rest[:-18], rest[-18:]
    for ks in range(4):
        for x in qread(ks): A(x)
    pos = 0
    nb = len(body) - 17
    for ks in range(28):
        tgt = nb * (ks + 1) // 28
        for x in body[pos:tgt]: A(x)
        pos = tgt
        inflight = min(3, 27 - ks)
        A(f"s_waitcnt lgkmcnt({3 * inflight})")
        xr = X + 4 * ks
        r = QF + 4 * (ks & 3)
        A(f"v_mfma_f32_32x32x16_bf16 v[{AQ}:{AQ+15}], v[{r}:{r+3}], v[{xr}:{xr+3}], v[{AQ}:{AQ+15}]")
        if ks + 4 < 28:
            for x in qread(ks + 4): A(x)
    for x in body[pos:]: A(x)
    for x in tail: A(x)
    A.stamp(3)
    TP, TM = 64, 80
    for (src, dst) in ((OP, TP), (OM, TM)):
        A(f"v_mfma_f32_32x32x16_bf16 v[{dst}:{dst+15}], v[{src}:{src+3}], v[{IDF}:{IDF+3}], 0")
        A(f"v_mfma_f32_32x32x16_bf16 v[{dst}:{dst+15}], v[{src+4}:{src+7}], v[{IDF+4}:{IDF+7}], v[{dst}:{dst+15}]")
    TPp, TMp = 96, 104
    for (src, dst) in ((TP, TPp), (TM, TMp)):
        for j in range(8): A(f"v_cvt_pk_bf16_f32 v{dst+j}, v{src+2*j}, v{src+2*j+1}")
    for (src, dst) in ((TPp, TP), (TMp, TM)):
        A(f"v_mfma_f32_32x32x16_bf16 v[{dst}:{dst+15}], v[{src}:{src+3}], v[{VB}:{VB+3}], 0")
        A(f"v_mfma_f32_32x32x16_bf16 v[{dst}:{dst+15}], v[{src+4}:{src+7}], v[{VB+4}:{VB+7}], v[{dst}:{dst+15}]")
    A(f"""
  v_lshlrev_b32 v2, 4, v1
  s_lshl_b32 s48, s6, 13
  s_add_u32 s48, s48, {RED}
  v_add_u32 v10, s48, v2
  s_lshl_b32 s48, s6, 10
  v_add_u32 v26, s48, v2
  v_add_u32 v11, {RED}, v26
  """)
    for q in range(8): A(f"ds_write_b128 v10, v[{64+4*q}:{64+4*q+3}] offset:{1024*q}")
    A("s_waitcnt lgkmcnt(0)")
    A("s_barrier")
    for ww in range(8):
        r = 64 + 4 * ww
        A(f"ds_read_b128 v[{r}:{r+3}], v11 offset:{8192*ww}")
    A("s_waitcnt lgkmcnt(0)")
    for lvl in (4, 8, 16):
        for b0 in range(64, 96, 2 * lvl):
            for i in (0, 2):
                A(f"v_pk_add_f32 v[{b0+i}:{b0+i+1}], v[{b0+i}:{b0+i+1}], v[{b0+lvl+i}:{b0+lvl+i+1}]")
    A.stamp(4)
    A(f"""
  s_lshl_b32 s49, s7, 16
  s_lshl_b32 s48, s5, 13
  s_add_u32 s48, s48, s49
  s_add_u32 s48, s48, {KVP_OFF}
  s_add_u32 s49, s49, {KVP_OFF}
  buffer_store_dwordx4 v[64:67], v26, s[12:15], s48 offen sc1
  s_waitcnt vmcnt(0)
  s_barrier
  s_cmp_lg_u32 s6, 0
  s_cbranch_scc1 LA_nopub
  """)
    stageF.get_token(A, "LA_tok", 31)
    A(f"""
  s_lshl_b32 s51, s7, 7
  s_add_u32 s51, s51, {stageF.FLKV}
  s_lshl_b32 s54, s5, 2
  s_add_u32 s54, s54, s51
  v_mov_b32 v2, s96
  v_mov_b32 v27, s54
  s_mov_b64 s[56:57], exec
  s_mov_b64 exec, 1
  buffer_store_dword v2, v27, s[12:15], 0 offen sc1
  s_mov_b64 exec, s[56:57]
  v_lshlrev_b32 v27, 2, v1
  v_add_u32 v27, s51, v27
LA_nopub:
  """)
    A.stamp(5)
    stageF.wo_prefetch(A, 0, 10, 11, "LA_nowo")
    A.stamp(6)
    for j in range(8): A(f"v_cvt_pk_bf16_f32 v{KB+j}, v{AQ+2*j}, v{AQ+2*j+1}")
    A(f"v_mfma_f32_32x32x16_bf16 v[{PA}:{PA+15}], v[{PHI}:{PHI+3}], v[{KB}:{KB+3}], 0")
    A(f"v_mfma_f32_32x32x16_bf16 v[{PA}:{PA+15}], v[{PHI+4}:{PHI+7}], v[{KB+4}:{KB+7}], v[{PA}:{PA+15}]")
    A(f"""
  v_and_b32 v10, 0xffff0000, v{KB+6}
  v_mul_f32 v10, s47, v10
  v_sub_f32 v10, 0, v10
  v_exp_f32 v10, v10
  v_add_f32 v10, 1.0, v10
  v_rcp_f32 v10, v10
  v_cvt_pk_bf16_f32 v10, v10, v10
  v_lshlrev_b32 v10, 16, v10
  v_lshlrev_b32 v11, 2, v5
  s_cmp_lg_u32 s7, 0
  s_cbranch_scc1 LA_nog
  s_mov_b64 s[56:57], exec
  s_mov_b64 exec, s[52:53]
  s_mov_b32 s48, {G_OFF}
  buffer_store_dword v10, v11, s[12:15], s48 offen sc1
  s_mov_b64 exec, s[56:57]
LA_nog:
  """)
    softmax_feats(A, PA, OP, OM, 88)
    A.stamp(7)
    A("""
  s_cmp_lg_u32 s6, 0
  s_cbranch_scc1 LA_nopoll
  """)
    stageF.poll_flags(A, "LA_poll", 8, 27, sleep=2)
    A("""
LA_nopoll:
  s_barrier
  """)
    A.stamp(8)
    PL = 64
    for pp in range(8):
        A(f"s_add_u32 s48, s49, {8192*pp}")
        A(f"buffer_load_dwordx4 v[{PL+4*pp}:{PL+4*pp+3}], v26, s[12:15], s48 offen sc1")
    A("s_waitcnt vmcnt(0)")
    for lvl in (4, 8, 16):
        for b0 in range(64, 96, 2 * lvl):
            for i in (0, 2):
                A(f"v_pk_add_f32 v[{b0+i}:{b0+i+1}], v[{b0+i}:{b0+i+1}], v[{b0+lvl+i}:{b0+lvl+i+1}]")
    A.stamp(9)
    A(f"""
  v_cvt_pk_bf16_f32 v72, v64, v65
  v_cvt_pk_bf16_f32 v73, v66, v67
  v_lshlrev_b32 v2, 4, v1
  s_lshr_b32 s48, s6, 1
  s_lshl_b32 s48, s48, 10
  s_and_b32 s51, s6, 1
  s_lshl_b32 s51, s51, 3
  s_add_u32 s48, s48, s51
  s_add_u32 s48, s48, {KVF}
  v_add_u32 v10, s48, v2
  ds_write_b64 v10, v[72:73]
  v_add_u32 v2, {KVF}, v2
  s_waitcnt lgkmcnt(0)
  s_barrier
  """)
    for fi in range(4): A(f"ds_read_b128 v[{80+4*fi}:{80+4*fi+3}], v2 offset:{1024*fi}")
    NUM = 96
    A("s_waitcnt lgkmcnt(0)")
    srcs = [OP, OP + 4, OM, OM + 4]
    for fi in range(4):
        c = "0" if fi == 0 else f"v[{NUM}:{NUM+15}]"
        A(f"v_mfma_f32_32x32x16_bf16 v[{NUM}:{NUM+15}], v[{80+4*fi}:{80+4*fi+3}], v[{srcs[fi]}:{srcs[fi]+3}], {c}")
    NBr = 112
    for j in range(8): A(f"v_cvt_pk_bf16_f32 v{NBr+j}, v{NUM+2*j}, v{NUM+2*j+1}")
    A(f"""
  v_lshlrev_b32 v10, 16, v{NBr+6}
  v_mov_b32 v11, v10
  v_permlane32_swap_b32 v11, v10
  v_add_f32 v10, 0x358637bd, v10
  v_cvt_pk_bf16_f32 v10, v10, v10
  v_lshlrev_b32 v10, 16, v10
  v_rcp_f32 v10, v10
  """)
    for j in range(8):
        A(f"v_lshlrev_b32 v{NUM+2*j}, 16, v{NBr+j}")
        A(f"v_and_b32 v{NUM+2*j+1}, 0xffff0000, v{NBr+j}")
    for j in range(8):
        A(f"v_pk_mul_f32 v[{NUM+2*j}:{NUM+2*j+1}], v[{NUM+2*j}:{NUM+2*j+1}], v[10:11] op_sel:[0,0] op_sel_hi:[1,0]")
    for j in range(8): A(f"v_cvt_pk_bf16_f32 v{NBr+j}, v{NUM+2*j}, v{NUM+2*j+1}")
    A(f"""
  v_cndmask_b32 v{NBr+6}, v{NBr+6}, 0, s[52:53]
  v_cndmask_b32 v{NBr+7}, v{NBr+7}, 0, s[52:53]
  v_lshlrev_b32 v2, 6, v3
  v_lshl_add_u32 v2, v4, 3, v2
  s_lshl_b32 s48, s6, 11
  s_add_u32 s48, s48, {OST}
  v_add_u32 v2, s48, v2
  v_lshlrev_b32 v11, 4, v1
  v_add_u32 v10, s48, v11
  """)
    for q in range(4):
        A(f"ds_write_b64 v2, v[{NBr+2*q}:{NBr+2*q+1}] offset:{16*q}")
    A(f"""
  s_lshl_b32 s48, s7, 17
  s_lshl_b32 s51, s43, 6
  s_add_u32 s48, s48, s51
  s_add_u32 s48, s48, {O_OFF}
  s_waitcnt lgkmcnt(0)
  ds_read_b128 v[96:99], v10
  ds_read_b128 v[100:103], v10 offset:1024
  s_waitcnt lgkmcnt(1)
  buffer_store_dwordx4 v[96:99], v11, s[12:15], s48 offen sc1
  s_waitcnt lgkmcnt(0)
  buffer_store_dwordx4 v[100:103], v11, s[12:15], s48 offen offset:1024 sc1
  """)
    A.stamp(10)
    A(f"""
  s_waitcnt vmcnt(0)
  s_barrier
  s_cmp_lg_u32 s6, 0
  s_cbranch_scc1 LA_nopub2
  v_lshlrev_b32 v27, 10, v1
  s_lshl_b32 s51, s5, 7
  s_lshl_b32 s54, s7, 2
  s_add_u32 s51, s51, s54
  s_add_u32 s51, s51, {stageF.FLF}
  v_mov_b32 v2, s96
  s_mov_b64 s[56:57], exec
  s_mov_b64 exec, 0xfffffff
  buffer_store_dword v2, v27, s[12:15], s51 offen sc1
  s_mov_b64 exec, s[56:57]
LA_nopub2:
  """)
    A.stamp(12)
    stageF.stage_F(A, 0, 57344, 122880, "A")
```

```python
from asmlib import Asm
import stageF

LOG2E = 0x3FB8AA3B
INV2PI = 0x3E22F983
XT_OFF = 0x000000
YT_OFF = 0x200000
KVP_OFF = 0x400000
O_OFF = 0x600000
G_OFF = 0x800000
WS_SIZE = 0x1000000
STG = 8704
CH_REG = 2 * STG
CPY = 4160
U_BASE = 4 * CH_REG
U_SZ = 4608
EX_BASE = U_BASE + 4 * U_SZ
B_LDS = EX_BASE + 8 * 2048
YST = 73728 + 8192

def interleave(*lists):
    out = []; idx = [0] * len(lists)
    while any(idx[i] < len(lists[i]) for i in range(len(lists))):
        for i, l in enumerate(lists):
            if idx[i] < len(l):
                out.append(l[idx[i]]); idx[i] += 1
    return out

def cmul(dst, z, w, t, conj=False):
    a = [f"v_pk_mul_f32 v[{t}:{t+1}], v[{z}:{z+1}], v[{w}:{w+1}] op_sel:[0,0] op_sel_hi:[1,0]"]
    if not conj:
        a.append(f"v_pk_fma_f32 v[{dst}:{dst+1}], v[{z}:{z+1}], v[{w}:{w+1}], v[{t}:{t+1}] op_sel:[1,1,0] op_sel_hi:[0,1,1] neg_lo:[1,0,0]")
    else:
        a.append(f"v_pk_fma_f32 v[{dst}:{dst+1}], v[{z}:{z+1}], v[{w}:{w+1}], v[{t}:{t+1}] op_sel:[1,1,0] op_sel_hi:[0,1,1] neg_hi:[1,0,0]")
    return a

def role_B(A, ABASE=128):
    A.comment("================= ROLE B (v2) =================")
    A.stamp(0)
    A(f"""
  s_sub_u32 s3, s2, {ABASE}
  s_load_dwordx2 s[40:41], s[0:1], 8
  s_and_b32 s4, s3, 7
  s_and_b32 s5, s3, 1
  s_mul_i32 s4, s4, 14
  s_lshr_b32 s3, s3, 3
  s_mul_i32 s43, s3, 86016
  s_mul_i32 s5, s5, 384
  s_add_u32 s43, s43, s5
  s_add_u32 s3, s3, s4
  s_load_dwordx8 s[16:23], s[0:1], 40
  s_load_dwordx4 s[24:27], s[0:1], 72
  s_load_dwordx2 s[28:29], s[0:1], 88
  s_load_dwordx4 s[32:35], s[0:1], 120
  s_load_dwordx2 s[36:37], s[0:1], 0
  v_and_b32 v1, 63, v0
  v_lshrrev_b32 v2, 6, v0
  s_nop 0
  v_readfirstlane_b32 s6, v2
  """)
    A("""
  s_lshr_b32 s38, s6, 1
  s_and_b32 s39, s6, 1
  s_lshl_b32 s7, s3, 2
  s_add_u32 s7, s7, s38
  s_mul_i32 s42, s6, %d
  """ % STG)
    A("""
  v_lshlrev_b32 v5, 2, v1
  s_lshl_b32 s44, s7, 9
  s_lshl_b32 s45, s39, 8
  s_add_u32 s44, s44, s45
  v_add_u32 v5, s44, v5
  s_lshl_b32 s45, s7, 1
  v_mov_b32 v6, s45
  v_mul_u32_u24 v3, 3584, v0
  s_lshl_b32 s45, s3, 3
  s_waitcnt lgkmcnt(0)
  s_mov_b32 s8, s36
  s_mov_b32 s9, s37
  s_mov_b32 s10, 1835008
  s_mov_b32 s11, 0x00020000
  s_mov_b32 s12, s34
  s_mov_b32 s13, s35
  s_mov_b32 s14, %d
  s_mov_b32 s15, 0x00020000
  global_load_dword v16, v5, s[16:17]
  global_load_dword v17, v5, s[18:19]
  global_load_dword v18, v5, s[20:21]
  global_load_dword v19, v5, s[22:23]
  global_load_dword v20, v5, s[24:25]
  global_load_dword v21, v5, s[26:27]
  global_load_ushort v22, v6, s[28:29]
  buffer_load_dwordx2 v[80:81], v3, s[8:11], s45 offen
  buffer_load_dwordx2 v[82:83], v3, s[8:11], s45 offen offset:896
  buffer_load_dwordx2 v[84:85], v3, s[8:11], s45 offen offset:1792
  buffer_load_dwordx2 v[86:87], v3, s[8:11], s45 offen offset:2688
  """ % WS_SIZE)
    A("""
  v_lshlrev_b32 v11, 2, v1
  v_add_u32 v11, s42, v11
  v_and_b32 v12, 31, v1
  v_mul_u32_u24 v12, 272, v12
  v_lshrrev_b32 v13, 5, v1
  v_lshl_add_u32 v12, v13, 4, v12
  v_add_u32 v12, s42, v12
  s_mov_b32 s47, 0x%x
  s_mov_b32 s48, 0x%x
  s_waitcnt vmcnt(4)
  """ % (LOG2E, INV2PI))
    A.stamp(2)
    A("""
  v_lshlrev_b32 v22, 16, v22
  v_mul_f32 v22, s47, v22
  v_exp_f32 v22, v22
  v_cvt_pk_bf16_f32 v22, v22, v22
  v_lshlrev_b32 v22, 16, v22
  """)
    ACC = 96
    for i in range(16): A(f"v_mov_b32 v{ACC+i}, 0")
    A("s_mov_b32 s49, 0")
    A.label("LB_pass")
    ar, th, dbr, dbi = 32, 33, 34, 35
    W, E, E2, E4, E8, G = 36, 38, 40, 42, 44, 46
    t0, t1, t2 = 48, 50, 52
    Z1, Z2, Z3, Z4 = 54, 56, 58, 60
    P = 62
    c1, c2, c3, c4 = 64, 65, 66, 67
    AF = 112
    BF = 144
    A(f"""
  v_lshlrev_b32 v{ar}, 16, v16
  v_lshlrev_b32 v{th}, 16, v17
  v_lshlrev_b32 v{dbr}, 16, v18
  v_lshlrev_b32 v{dbi}, 16, v19
  v_lshlrev_b32 v{t0}, 16, v20
  v_lshlrev_b32 v{t0+1}, 16, v21
  v_mul_f32 v{ar}, v{ar}, v22
  v_mul_f32 v{th}, v{th}, v22
  v_mul_f32 v{dbr}, v{dbr}, v22
  v_mul_f32 v{dbi}, v{dbi}, v22
  v_mul_f32 v{ar}, s47, v{ar}
  v_mul_f32 v{th}, s48, v{th}
  """)
    A("\n".join(cmul(W, t0, dbr, t1)))
    def cis(dst, l, m, ph):
        return [f"v_mul_f32 v{m}, {l}, v{ar}" if isinstance(l, str) else f"v_mul_f32 v{m}, {float(l)}, v{ar}",
                f"v_mul_f32 v{ph}, {l}, v{th}" if isinstance(l, str) else f"v_mul_f32 v{ph}, {float(l)}, v{th}",
                f"v_exp_f32 v{m}, v{m}",
                f"v_fract_f32 v{ph}, v{ph}",
                f"v_cos_f32 v{dst}, v{ph}",
                f"v_sin_f32 v{dst+1}, v{ph}",
                f"v_pk_mul_f32 v[{dst}:{dst+1}], v[{dst}:{dst+1}], v[{m}:{m+1}] op_sel:[0,0] op_sel_hi:[1,0]"]
    import struct
    fl = lambda x: "0x%08x" % struct.unpack('<I', struct.pack('<f', x))[0]
    l1 = cis(E, fl(1.0), t0, t0+1); l8 = cis(E8, fl(8.0), t1, t1+1); l256 = cis(G, fl(256.0), t2, t2+1)
    for x in interleave(l1, l8, l256): A(x)
    A("\n".join(cmul(E2, E, E, t0)))
    A("\n".join(cmul(E4, E2, E2, t0)))
    def wr(z, rows, tmp):
        o = [f"v_cvt_pk_bf16_f32 v{tmp}, v{z}, v{z+1}"]
        for r in rows: o.append(f"ds_write_b32 v11, v{tmp} offset:{r*272}")
        return o
    ch1 = wr(W, [0], c1)
    prev = W
    for p in range(1, 8):
        ch1 += cmul(Z1, prev, E, t0) + wr(Z1, [p], c1); prev = Z1
    P256, P512, P768, PX = 68, 70, 72, 74
    pre = cmul(P256, W, G, t1) + cmul(P512, P256, G, t1) + cmul(P768, P512, G, t1)
    ch2 = wr(P256, [8], c2) + cmul(Z2, P256, E2, t1) + wr(Z2, [9], c2) + cmul(Z2, Z2, E2, t1) + wr(Z2, [10, 12], c2) \
        + cmul(Z2, Z2, E2, t1) + wr(Z2, [13], c2) + cmul(Z2, Z2, E2, t1) + wr(Z2, [14], c2)
    ch3 = wr(P512, [16], c3) + cmul(Z3, P512, E4, t2) + wr(Z3, [17, 20], c3) + cmul(Z3, Z3, E4, t2) + wr(Z3, [21], c3) \
        + wr(P768, [18], c3) + cmul(Z3, P768, E4, t2) + wr(Z3, [19, 22], c3) + cmul(Z3, Z3, E4, t2) + wr(Z3, [23], c3)
    t3 = 76
    ch4 = []
    prevp = P768
    for i in range(4):
        ch4 += cmul(PX, prevp, G, t3) + wr(PX, [24 + i], c4) + cmul(Z4, PX, E8, t3) + wr(Z4, [28 + i], c4)
        prevp = PX
    for x in pre: A(x)
    for x in interleave(ch1, ch2, ch3, ch4): A(x)
    A("s_waitcnt lgkmcnt(0)")
    for s in range(8): A(f"ds_read_b128 v[{AF+4*s}:{AF+4*s+3}], v12 offset:{32*s}")
    E16, E32, E64 = 36, 38, 40
    A("\n".join(cmul(E16, E8, E8, t0)))
    A("\n".join(cmul(E32, E16, E16, t0)))
    A("\n".join(cmul(E64, E32, E32, t0)))
    S8, S16, S24 = 42, 46, 68
    A("\n".join(cmul(S16, E64, E64, t0)))
    A("\n".join(cmul(S24, S16, E64, t0)))
    A(f"v_mov_b32 v{S8}, v{E64}")
    A(f"v_xor_b32 v{S8+1}, 0x80000000, v{E64+1}")
    A(f"v_xor_b32 v{S16+1}, 0x80000000, v{S16+1}")
    A(f"v_xor_b32 v{S24+1}, 0x80000000, v{S24+1}")
    A(f"v_mov_b32 v{Z1}, 1.0")
    A(f"v_mov_b32 v{Z1+1}, 0")
    A("s_waitcnt lgkmcnt(0)")
    ys = []
    for ci, (z, start, tt, cc) in enumerate([(Z1, Z1, t0, c1), (Z2, S8, t1, c2), (Z3, S16, t2, c3), (Z4, S24, t3, c4)]):
        l = wr(start, [8 * ci], cc)
        prev = start
        for j in range(1, 8):
            l += cmul(z, prev, E8, tt, conj=True) + wr(z, [8 * ci + j], cc); prev = z
        ys.append(l)
    for x in interleave(*ys): A(x)
    A("s_waitcnt lgkmcnt(0)")
    for s in range(8): A(f"ds_read_b128 v[{BF+4*s}:{BF+4*s+3}], v12 offset:{32*s}")
    for s in range(8):
        A(f"s_waitcnt lgkmcnt({7-s})")
        A(f"v_mfma_f32_32x32x16_bf16 v[{ACC}:{ACC+15}], v[{AF+4*s}:{AF+4*s+3}], v[{BF+4*s}:{BF+4*s+3}], v[{ACC}:{ACC+15}]")
    for i in range(16, 22): A(f"v_lshrrev_b32 v{i}, 16, v{i}")
    A("""
  s_add_u32 s49, s49, 1
  s_cmp_lt_u32 s49, 2
  s_cbranch_scc1 LB_pass
  """)
    A.stamp(3)
    A(f"""
  v_lshlrev_b32 v2, 4, v1
  s_lshl_b32 s45, s6, 11
  s_add_u32 s45, s45, {EX_BASE}
  v_add_u32 v3, s45, v2
  s_xor_b32 s46, s6, 1
  s_lshl_b32 s46, s46, 11
  s_add_u32 s46, s46, {EX_BASE}
  v_add_u32 v4, s46, v2
  s_nop 7
  s_nop 7
  s_cmp_eq_u32 s39, 0
  s_cbranch_scc1 LB_ex0
  ds_write_b128 v3, v[{ACC}:{ACC+3}]
  ds_write_b128 v3, v[{ACC+4}:{ACC+7}] offset:1024
  s_branch LB_ex1
LB_ex0:
  ds_write_b128 v3, v[{ACC+8}:{ACC+11}]
  ds_write_b128 v3, v[{ACC+12}:{ACC+15}] offset:1024
LB_ex1:
  s_waitcnt lgkmcnt(0)
  s_barrier
  """)
    A.stamp(4)
    A(f"""
  ds_read_b128 v[24:27], v4
  ds_read_b128 v[28:31], v4 offset:1024
  s_mov_b32 s45, 0x05040100
  s_mov_b32 s46, 0x07060302
  s_waitcnt vmcnt(0)
  v_perm_b32 v88, v82, v80, s45
  v_perm_b32 v89, v86, v84, s45
  v_perm_b32 v90, v82, v80, s46
  v_perm_b32 v91, v86, v84, s46
  v_perm_b32 v92, v83, v81, s45
  v_perm_b32 v93, v87, v85, s45
  v_perm_b32 v94, v83, v81, s46
  v_perm_b32 v95, v87, v85, s46
  v_lshlrev_b32 v8, 3, v0
  v_add_u32 v8, {U_BASE + 512}, v8
  ds_write_b64 v8, v[88:89]
  ds_write_b64 v8, v[90:91] offset:{U_SZ}
  ds_write_b64 v8, v[92:93] offset:{2*U_SZ}
  ds_write_b64 v8, v[94:95] offset:{3*U_SZ}
  v_and_b32 v9, 31, v1
  v_lshrrev_b32 v10, 5, v1
  s_mul_i32 s46, s38, {CH_REG}
  v_lshlrev_b32 v13, 4, v9
  v_lshl_add_u32 v13, v10, 3, v13
  v_sub_u32 v13, {2*2044}, v13
  v_add_u32 v13, s46, v13
  v_cmp_eq_u32 s[52:53], 1, v10
  s_cmp_eq_u32 s39, 1
  s_waitcnt lgkmcnt(4)
  s_cbranch_scc1 LB_w1
  """)
    for i in range(8): A(f"v_add_f32 v{24+i}, v{24+i}, v{ACC+i}")
    A(f"""
  v_cvt_pk_bf16_f32 v32, v27, v26
  v_cvt_pk_bf16_f32 v33, v25, v24
  v_cvt_pk_bf16_f32 v34, v30, v29
  v_cvt_pk_bf16_f32 v35, v28, v28
  v_subrev_u32 v14, 512, v13
  ds_write_b64 v13, v[32:33]
  ds_write_b64 v14, v[34:35]
  v_mov_b32 v36, 0
  v_mov_b32 v37, 0
  v_lshlrev_b32 v14, 3, v1
  v_add_u32 v14, s46, v14
  s_mov_b64 s[50:51], exec
  s_mov_b64 exec, 0xff
  ds_write_b64 v14, v[36:37] offset:4096
  s_mov_b64 exec, s[50:51]
  s_branch LB_w2
LB_w1:
  """)
    for i in range(8): A(f"v_add_f32 v{24+i}, v{24+i}, v{ACC+8+i}")
    A("""
  v_cndmask_b32 v32, v24, v25, s[52:53]
  v_cndmask_b32 v33, v26, v27, s[52:53]
  v_cvt_pk_bf16_f32 v34, v25, v32
  v_cvt_pk_bf16_f32 v35, v24, v24
  v_cvt_pk_bf16_f32 v36, v27, v33
  v_cvt_pk_bf16_f32 v37, v26, v26
  v_subrev_u32 v14, 1024, v13
  ds_write_b64 v14, v[34:35]
  v_subrev_u32 v14, 1536, v13
  ds_write_b64 v14, v[36:37]
  v_and_b32 v14, 1, v9
  v_and_b32 v14, v14, v10
  v_cmp_eq_u32 s[54:55], 1, v14
  """)
    for i in range(4):
        f = 28 + i
        A(f"""
  v_mov_b32 v38, v{f}
  v_mov_b32 v39, v{f}
  v_permlane32_swap_b32 v38, v39
  v_cndmask_b32 v38, v38, v{f}, s[54:55]
  v_cvt_pk_bf16_f32 v{40+2*i}, v{f}, v{f}
  v_cvt_pk_bf16_f32 v{41+2*i}, v{f}, v38
  v_subrev_u32 v14, {2048 + 512*i}, v13
  ds_write_b64 v14, v[{40+2*i}:{41+2*i}]
  """)
    A.label("LB_w2")
    A(f"""
  v_mov_b32 v36, 0
  v_mov_b32 v37, 0
  v_mov_b32 v38, 0
  v_mov_b32 v39, 0
  v_lshrrev_b32 v5, 5, v0
  v_and_b32 v6, 31, v0
  v_mul_u32_u24 v14, {U_SZ}, v5
  v_lshl_add_u32 v14, v6, 4, v14
  v_add_u32 v14, {U_BASE}, v14
  v_cmp_gt_u32 vcc, 128, v0
  s_and_saveexec_b64 s[50:51], vcc
  ds_write_b128 v14, v[36:39]
  s_mov_b64 exec, s[50:51]
  s_waitcnt lgkmcnt(0)
  s_barrier
  """)
    A.stamp(5)
    stageF.wo_prefetch(A, 104448, 46, 47, "LB_nowo")
    A("""
  v_lshlrev_b32 v46, 3, v1
  v_add_u32 v46, 161792, v46
  ds_write_b64 v46, v[36:37]
  """)
    A(f"""
  s_lshl_b32 s45, s39, 10
  s_add_u32 s45, s45, s46
  v_lshlrev_b32 v14, 4, v1
  v_add_u32 v14, s45, v14
  ds_read_b128 v[24:27], v14
  ds_read_b64 v[28:29], v14 offset:16
  ds_read_b128 v[40:43], v14 offset:2048
  ds_read_b64 v[44:45], v14 offset:2064
  v_and_b32 v15, 1, v1
  v_lshlrev_b32 v15, 4, v15
  v_add_u32 v15, s46, v15
  ds_write_b128 v15, v[36:39] offset:{4096 + CPY}
  ds_write_b128 v15, v[36:39] offset:{4096 + 2*CPY}
  ds_write_b128 v15, v[36:39] offset:{4096 + 3*CPY}
  """)
    for (d, off, wait) in ((24, 0, 5), (40, 2048, 3)):
        A(f"s_waitcnt lgkmcnt({wait})")
        o1, o3 = 48, 52
        for k in range(4): A(f"v_alignbit_b32 v{o1+k}, v{d+k+1}, v{d+k}, 16")
        for k in range(4): A(f"v_alignbit_b32 v{o3+k}, v{d+k+2}, v{d+k+1}, 16")
        A(f"v_mov_b32 v56, v{d+1}\nv_mov_b32 v57, v{d+2}\nv_mov_b32 v58, v{d+3}\nv_mov_b32 v59, v{d+4}")
        A(f"ds_write_b128 v14, v[{o1}:{o1+3}] offset:{off + CPY}")
        A(f"ds_write_b128 v14, v[56:59] offset:{off + 2*CPY}")
        A(f"ds_write_b128 v14, v[{o3}:{o3+3}] offset:{off + 3*CPY}")
        A("s_nop 1")
    A(f"""
  v_and_b32 v2, 15, v1
  v_lshrrev_b32 v3, 4, v1
  v_and_b32 v4, 3, v2
  v_sub_u32 v4, 3, v4
  v_mul_u32_u24 v4, {CPY}, v4
  v_lshrrev_b32 v5, 2, v2
  v_lshlrev_b32 v5, 3, v5
  v_lshlrev_b32 v6, 4, v3
  v_sub_u32 v6, v6, v5
  v_add_u32 v6, {2*2028 - 64*63}, v6
  v_add3_u32 v4, v4, v6, s46
  s_mul_i32 s45, s38, {U_SZ}
  v_lshlrev_b32 v5, 5, v2
  v_lshl_add_u32 v5, v3, 4, v5
  v_add_u32 v5, {U_BASE + 32}, v5
  v_add_u32 v5, s45, v5
  v_lshlrev_b32 v6, 5, v2
  v_lshl_add_u32 v6, v3, 3, v6
  s_lshl_b32 s45, s7, 12
  s_add_u32 s45, s45, {YT_OFF}
  s_waitcnt lgkmcnt(0)
  s_barrier
  """)
    A.stamp(6)
    stageF.token_issue(A, 15)
    A("""
  s_cmp_eq_u32 s39, 1
  s_cbranch_scc1 LB_convB
  """)
    conv(A, [7, 6, 2], "A")
    A("s_branch LB_end")
    A.label("LB_convB")
    conv(A, [5, 4, 3, 1, 0], "B")
    A.label("LB_end")
    A.stamp(7)
    A(f"""
  s_waitcnt vmcnt(0)
  s_barrier
  s_cmp_lg_u32 s6, 0
  s_cbranch_scc1 LB_nopub2
  """)
    stageF.get_token(A, "LB_tok", 15)
    A(f"""
  s_lshr_b32 s51, s3, 4
  s_lshl_b32 s51, s51, 12
  s_and_b32 s54, s3, 15
  s_lshl_b32 s54, s54, 2
  s_add_u32 s51, s51, s54
  s_add_u32 s51, s51, {stageF.FLF + 64}
  v_and_b32 v27, 3, v1
  v_lshlrev_b32 v27, 10, v27
  v_lshrrev_b32 v16, 2, v1
  v_lshl_add_u32 v27, v16, 7, v27
  v_mov_b32 v2, s96
  s_mov_b64 s[56:57], exec
  s_mov_b32 exec_hi, 0
  buffer_store_dword v2, v27, s[12:15], s51 offen sc1
  s_mov_b64 exec, s[56:57]
LB_nopub2:
  """)
    A.stamp(12)
    import os
    if os.environ.get("BNOF"): A("s_sleep 127\ns_sleep 127\ns_sleep 127")
    stageF.stage_F(A, 104448, 0, 65536, "B")

def conv(A, ns, tag):
    kmax = max(ns)
    ACC = {n: 16 + 4 * i for i, n in enumerate(ns)}
    for n in ns:
        for r in range(4): A(f"v_mov_b32 v{ACC[n]+r}, 0")
    BSET = [40, 72]
    APOOL = [104 + 4 * i for i in range(6)]
    loads = []
    mf = []
    seq = []
    lid = 0
    loadinfo = {}
    order = []
    apool_i = 0
    for D in range(8):
        bid = {}
        for k in range(kmax + 1):
            m = 8 * k + D
            areg = APOOL[apool_i % len(APOOL)]; apool_i += 1
            loadinfo[lid] = ('A', areg, 64 * (63 - m)); aid = lid; lid += 1
            need_first = True
            for n in sorted(ns, reverse=True):
                if k > n: continue
                j = n - k
                if j not in bid:
                    sigma = 8 * j - D
                    loadinfo[lid] = ('B', BSET[D & 1] + 4 * j, 64 * (sigma + 7)); bid[j] = lid; lid += 1
                order.append((ACC[n], aid, bid[j]))
    first = {}
    for i, (acc, a, b) in enumerate(order):
        first.setdefault(a, i); first.setdefault(b, i)
    lseq = sorted(loadinfo, key=lambda x: (first[x], x))
    ninstr = {x: (2 if loadinfo[x][0] == 'A' else 1) for x in loadinfo}
    lastuse = {}
    for i, (acc, a, b) in enumerate(order):
        lastuse[a] = i; lastuse[b] = i
    prev_same = {}
    seen = {}
    for x in lseq:
        reg = loadinfo[x][1]
        prev_same[x] = seen.get(reg)
        seen[reg] = x
    issued = []
    li = 0
    LOOK = 12
    def outstanding_after(x):
        idx = issued.index(x)
        return sum(ninstr[y] for y in issued[idx+1:])
    done_upto = -1
    for i, (acc, a, b) in enumerate(order):
        while li < len(lseq):
            x = lseq[li]
            ps = prev_same[x]
            if ps is not None and lastuse[ps] >= i: break
            out = sum(ninstr[y] for y in issued[done_upto+1:])
            if out + ninstr[x] > LOOK and first[x] > i: break
            kind, reg, off = loadinfo[x]
            if kind == 'A':
                A(f"ds_read_b64 v[{reg}:{reg+1}], v4 offset:{off}")
                A(f"ds_read_b64 v[{reg+2}:{reg+3}], v4 offset:{off+8}")
            else:
                A(f"ds_read_b128 v[{reg}:{reg+3}], v5 offset:{off}")
            issued.append(x); li += 1
        needx = max(issued.index(a), issued.index(b))
        if needx > done_upto:
            A(f"s_waitcnt lgkmcnt({outstanding_after(issued[needx])})")
            done_upto = needx
        ar = loadinfo[a][1]; br = loadinfo[b][1]
        A(f"v_mfma_f32_16x16x32_bf16 v[{acc}:{acc+3}], v[{ar}:{ar+3}], v[{br}:{br+3}], v[{acc}:{acc+3}]")
    A(f"s_lshl_b32 s46, s38, 12\ns_mul_i32 s47, s39, 1536\ns_add_u32 s46, s46, s47\ns_add_u32 s46, s46, {EX_BASE}\nv_add_u32 v7, s46, v6\nv_lshlrev_b32 v8, 4, v1\nv_add_u32 v9, s46, v8")
    for i, n in enumerate(ns):
        a = ACC[n]
        A(f"v_cvt_pk_bf16_f32 v{a}, v{a}, v{a+1}")
        A(f"v_cvt_pk_bf16_f32 v{a+1}, v{a+2}, v{a+3}")
        A(f"ds_write_b64 v7, v[{a}:{a+1}] offset:{512*i}")
    A("s_waitcnt lgkmcnt(0)")
    k = 0
    while k < len(ns):
        if k + 1 < len(ns):
            n0, n1 = ns[k], ns[k + 1]
            A(f"ds_read_b128 v[40:43], v9 offset:{512*k}")
            A(f"v_and_b32 v10, 31, v1\nv_lshlrev_b32 v10, 4, v10\nv_mov_b32 v11, {512*n0}\nv_mov_b32 v12, {512*n1}\nv_cmp_lt_u32 vcc, 31, v1\nv_cndmask_b32 v11, v11, v12, vcc\nv_add_u32 v10, v10, v11")
            A("s_waitcnt lgkmcnt(0)")
            A("buffer_store_dwordx4 v[40:43], v10, s[12:15], s45 offen sc1")
            A("s_nop 1")
            k += 2
        else:
            n0 = ns[k]
            A(f"s_mov_b64 s[50:51], exec\ns_mov_b32 exec_hi, 0")
            A(f"ds_read_b128 v[44:47], v9 offset:{512*k}")
            A("s_waitcnt lgkmcnt(0)")
            A(f"buffer_store_dwordx4 v[44:47], v8, s[12:15], s45 offen offset:{512*n0} sc1")
            A("s_mov_b64 exec, s[50:51]")
            k += 1
```

```python
from roleB import YT_OFF, O_OFF, G_OFF, WS_SIZE
FLF = 0x900000
FLKV = 0x910000

def token_issue(A, vt):
    A(f"v_mov_b32 v{vt}, 0\nglobal_load_dword v{vt}, v{vt}, s[32:33] sc1")

def get_token(A, lab, vt):
    A(f"""
  v_readfirstlane_b32 s96, v{vt}
  s_cmp_lg_u32 s96, 0
  s_cbranch_scc1 {lab}_ok
  v_mov_b32 v16, 0
  s_mov_b32 s51, 0
{lab}:
  global_load_dword v2, v16, s[32:33] sc1
  s_waitcnt vmcnt(0)
  v_readfirstlane_b32 s96, v2
  s_cmp_lg_u32 s96, 0
  s_cbranch_scc1 {lab}_ok
  s_sleep 4
  s_add_u32 s51, s51, 1
  s_cmp_lt_u32 s51, 0x20000
  s_cbranch_scc1 {lab}
{lab}_ok:
  """)

def poll_flags(A, lab, nl, voff, sleep=4):
    mask = (1 << nl) - 1
    A(f"""
  s_mov_b32 s51, 0
  s_mov_b64 s[56:57], exec
  s_mov_b64 exec, {hex(mask)}
{lab}:
  buffer_load_dword v18, v{voff}, s[12:15], 0 offen sc1
  s_waitcnt vmcnt(0)
  v_cmp_ne_u32 vcc, s96, v18
  s_cbranch_vccz {lab}_ok
  s_sleep {sleep}
  s_add_u32 s51, s51, 1
  s_cmp_lt_u32 s51, 0x20000
  s_cbranch_scc1 {lab}
{lab}_ok:
  s_mov_b64 exec, s[56:57]
  """)

def f_setup(A):
    A("""
  s_load_dwordx2 s[80:81], s[0:1], 24
  s_and_b32 s84, s2, 7
  s_lshr_b32 s85, s2, 3
  s_lshl_b32 s84, s84, 2
  s_and_b32 s86, s85, 3
  s_add_u32 s86, s84, s86
  s_lshr_b32 s84, s85, 2
  s_mov_b32 s85, s86
  s_mov_b32 s82, 401408
  s_mov_b32 s83, 0x00020000
  """)

def wo_prefetch(A, WOB, va, vb, lab):
    A(f"""
  s_cmp_ge_u32 s2, 224
  s_cbranch_scc1 {lab}
  v_lshrrev_b32 v{va}, 3, v1
  v_bfe_u32 v{vb}, v1, 4, 1
  v_lshlrev_b32 v{vb}, 2, v{vb}
  v_xor_b32 v{vb}, v{vb}, v1
  v_and_b32 v{vb}, 7, v{vb}
  v_mul_u32_u24 v{va}, 896, v{va}
  v_lshl_add_u32 v{va}, v{vb}, 4, v{va}
  s_lshl_b32 s86, s84, 7
  s_mul_i32 s87, s6, 7168
  s_add_u32 s86, s86, s87
  s_lshl_b32 s87, s6, 10
  """)
    for i in range(7):
        A(f"s_add_u32 m0, s87, {WOB + 8192*i}")
        A(f"s_add_u32 s95, s86, {57344*i}")
        A(f"buffer_load_dwordx4 v{va}, s[80:83], s95 offen lds")
    A(f"{lab}:")

def stage_F(A, WOB, OB, YB, tag):
    L = lambda n: f"LF{tag}_{n}"
    A(f"""
  s_cmp_ge_u32 s2, 224
  s_cbranch_scc1 {L('exit')}
  s_load_dwordx2 s[36:37], s[0:1], 0
  s_load_dwordx2 s[40:41], s[0:1], 96
  s_load_dwordx2 s[38:39], s[0:1], 112
  v_and_b32 v1, 63, v0
  v_and_b32 v3, 31, v1
  v_lshrrev_b32 v4, 5, v1
  s_and_b32 s43, s6, 1
  s_bfe_u32 s44, s6, 0x10001
  s_lshl_b32 s45, s85, 6
  s_lshl_b32 s46, s43, 5
  s_add_u32 s46, s45, s46
  v_add_u32 v5, s46, v3
  v_mul_u32_u24 v6, 896, v5
  v_lshrrev_b32 v8, 3, v1
  v_and_b32 v9, 7, v1
  v_lshrrev_b32 v10, 4, v1
  v_xor_b32 v10, v10, v1
  v_and_b32 v10, 3, v10
  v_lshrrev_b32 v11, 2, v1
  v_lshlrev_b32 v11, 6, v11
  v_lshl_add_u32 v11, v10, 4, v11
  v_bfe_u32 v10, v8, 1, 1
  v_lshlrev_b32 v10, 2, v10
  v_xor_b32 v10, v10, v9
  v_lshlrev_b32 v12, 12, v8
  v_lshl_add_u32 v12, v10, 4, v12
  s_waitcnt lgkmcnt(0)
  s_mov_b32 s8, s36
  s_mov_b32 s9, s37
  s_mov_b32 s10, 1835008
  s_mov_b32 s11, 0x00020000
  s_mov_b32 s20, s38
  s_mov_b32 s21, s39
  s_mov_b32 s22, 1835008
  s_mov_b32 s23, 0x00020000
  """)
    ACC, XV, DV, GV, YV = 128, 144, 152, 160, 162
    A(f"""
  s_lshl_b32 s49, s84, 7
  s_lshl_b32 s51, s44, 6
  s_add_u32 s49, s49, s51
  v_lshl_add_u32 v13, v4, 3, v6
  v_lshlrev_b32 v14, 3, v4
  v_add_u32 v14, s49, v14
  v_lshlrev_b32 v15, 2, v5
  s_cmp_ge_u32 s6, 4
  s_cbranch_scc1 {L('noepi')}
  """)
    for q in range(4):
        A(f"buffer_load_dwordx2 v[{XV+2*q}:{XV+2*q+1}], v13, s[8:11], s49 offen offset:{16*q}")
    for q in range(4):
        A(f"global_load_dwordx2 v[{DV+2*q}:{DV+2*q+1}], v14, s[40:41] offset:{16*q}")
    A(f"{L('noepi')}:")
    A(f"""
  s_cmp_lg_u32 s6, 0
  s_cbranch_scc1 {L('nopoll')}
  s_lshl_b32 s47, s2, 7
  s_add_u32 s47, s47, {FLF}
  v_lshlrev_b32 v16, 2, v1
  v_add_u32 v16, s47, v16
  """)
    poll_flags(A, L('poll'), 32, 16)
    A(f"""
{L('nopoll')}:
  s_barrier
  """)
    A.stamp(13)
    A(f"""
  s_lshl_b32 s47, s6, 18
  s_lshl_b32 s51, s45, 6
  s_add_u32 s47, s47, s51
  s_add_u32 s47, s47, {O_OFF}
  s_lshl_b32 s48, s6, 13
  """)
    for hh_ in range(2):
        for j in range(4):
            A(f"s_add_u32 m0, s48, {OB + 4096*hh_ + 1024*j}")
            A(f"s_add_u32 s51, s47, {131072*hh_ + 1024*j}")
            A("buffer_load_dwordx4 v11, s[12:15], s51 offen sc1 lds")
    A("s_lshl_b32 s48, s6, 10")
    A(f"""
  s_lshl_b32 s47, s84, 18
  s_lshl_b32 s51, s85, 7
  s_add_u32 s47, s47, s51
  s_lshl_b32 s51, s6, 15
  s_add_u32 s47, s47, s51
  s_add_u32 s47, s47, {YT_OFF}
  s_add_u32 m0, s48, {YB}
  s_mov_b32 s51, {G_OFF}
  buffer_load_dwordx4 v12, s[12:15], s47 offen sc1 lds
  buffer_load_dword v{GV}, v15, s[12:15], s51 offen sc1
  """)
    A(f"""
  v_and_b32 v2, 15, v1
  v_lshrrev_b32 v8, 4, v1
  v_lshrrev_b32 v9, 1, v8
  v_lshlrev_b32 v9, 3, v9
  v_lshrrev_b32 v10, 2, v2
  v_add_u32 v9, v9, v10
  v_lshlrev_b32 v9, 7, v9
  v_and_b32 v8, 1, v8
  v_lshl_add_u32 v9, v8, 5, v9
  v_and_b32 v10, 3, v2
  v_lshl_add_u32 v9, v10, 3, v9
  v_bfe_u32 v10, v2, 3, 1
  v_xor_b32 v10, s44, v10
  v_lshl_add_u32 v9, v10, 6, v9
  v_add_u32 v9, {WOB}, v9
  v_lshrrev_b32 v8, 4, v1
  v_lshrrev_b32 v10, 1, v8
  v_lshlrev_b32 v10, 2, v10
  v_lshrrev_b32 v12, 2, v2
  v_add_u32 v10, v10, v12
  s_lshl_b32 s51, s44, 5
  v_add_u32 v10, s51, v10
  v_lshlrev_b32 v10, 7, v10
  v_and_b32 v8, 1, v8
  v_lshl_add_u32 v10, v8, 5, v10
  v_and_b32 v12, 3, v2
  v_lshl_add_u32 v10, v12, 3, v10
  v_bfe_u32 v12, v2, 3, 1
  v_xor_b32 v12, s43, v12
  v_lshl_add_u32 v10, v12, 6, v10
  v_add_u32 v10, {YB}, v10
  v_bfe_u32 v2, v3, 2, 2
  s_lshl_b32 s51, s43, 11
  v_lshlrev_b32 v12, 6, v3
  v_add_u32 v12, s51, v12
  v_add_u32 v12, {OB}, v12
  """)
    OA = [20, 21]
    for kk in range(2):
        A(f"v_add_u32 v{OA[kk]}, {2*kk}, v4")
        A(f"v_xor_b32 v{OA[kk]}, v{OA[kk]}, v2")
        A(f"v_lshl_add_u32 v{OA[kk]}, v{OA[kk]}, 4, v12")
    for i in range(16): A(f"v_mov_b32 v{ACC+i}, 0")
    A(f"""
  s_waitcnt vmcnt(0)
  s_barrier
  s_cmp_ge_u32 s6, 4
  s_cbranch_scc1 {L('exit')}
  """)
    A.stamp(14)
    FR = 176
    def reads(C):
        Lr = []
        b = FR + 32 * (C & 1)
        for kk in range(4):
            h = 2 * C + (kk >> 1); half = kk & 1
            row0 = 28 * h + 16 * half
            Lr.append(f"ds_read_b64_tr_b16 v[{b+4*kk}:{b+4*kk+1}], v9 offset:{128*row0}")
            Lr.append(f"ds_read_b64_tr_b16 v[{b+4*kk+2}:{b+4*kk+3}], v9 offset:{128*row0 + 512}")
            Lr.append(f"ds_read_b128 v[{b+16+4*kk}:{b+16+4*kk+3}], v{OA[half]} offset:{4096*h}")
        return Lr
    from roleA2 import mix
    for x in reads(0): A(x)
    for C in range(8):
        A("s_waitcnt lgkmcnt(0)")
        rl = reads(C + 1) if C < 7 else [f"ds_read_b64_tr_b16 v[{YV+2*q}:{YV+2*q+1}], v10 offset:{1024*q}" for q in range(4)]
        b = FR + 32 * (C & 1)
        mf = [f"v_mfma_f32_32x32x16_bf16 v[{ACC}:{ACC+15}], v[{b+4*kk}:{b+4*kk+3}], v[{b+16+4*kk}:{b+16+4*kk+3}], v[{ACC}:{ACC+15}]" for kk in range(4)]
        mix(A, mf, rl)
    T = 16+16
    A(f"v_sub_f32 v{GV+1}, 1.0, v{GV}")
    A(f"v_cvt_pk_bf16_f32 v{GV+1}, v{GV+1}, v{GV+1}")
    A(f"v_lshlrev_b32 v{GV+1}, 16, v{GV+1}")
    A("s_waitcnt lgkmcnt(0)")
    for q in range(4):
        a = ACC + 4 * q
        t = T + 16 * q
        A(f"v_cvt_pk_bf16_f32 v{t}, v{a}, v{a+1}")
        A(f"v_cvt_pk_bf16_f32 v{t+1}, v{a+2}, v{a+3}")
        for h2 in range(2):
            A(f"v_lshlrev_b32 v{a+2*h2}, 16, v{t+h2}")
            A(f"v_and_b32 v{a+2*h2+1}, 0xffff0000, v{t+h2}")
        for (src, dst) in ((XV + 2 * q, t + 2), (DV + 2 * q, t + 6), (YV + 2 * q, t + 10)):
            for h2 in range(2):
                A(f"v_lshlrev_b32 v{dst+2*h2}, 16, v{src+h2}")
                A(f"v_and_b32 v{dst+2*h2+1}, 0xffff0000, v{src+h2}")
        for h2 in range(2):
            A(f"v_pk_mul_f32 v[{t+2+2*h2}:{t+3+2*h2}], v[{t+2+2*h2}:{t+3+2*h2}], v[{t+6+2*h2}:{t+7+2*h2}]")
        for h2 in range(2):
            A(f"v_cvt_pk_bf16_f32 v{t+6+h2}, v{t+2+2*h2}, v{t+3+2*h2}")
        for h2 in range(2):
            A(f"v_lshlrev_b32 v{t+2+2*h2}, 16, v{t+6+h2}")
            A(f"v_and_b32 v{t+3+2*h2}, 0xffff0000, v{t+6+h2}")
        for h2 in range(2):
            A(f"v_pk_add_f32 v[{t+2+2*h2}:{t+3+2*h2}], v[{t+2+2*h2}:{t+3+2*h2}], v[{t+10+2*h2}:{t+11+2*h2}]")
        for h2 in range(2):
            A(f"v_cvt_pk_bf16_f32 v{t+6+h2}, v{t+2+2*h2}, v{t+3+2*h2}")
        for h2 in range(2):
            A(f"v_lshlrev_b32 v{t+2+2*h2}, 16, v{t+6+h2}")
            A(f"v_and_b32 v{t+3+2*h2}, 0xffff0000, v{t+6+h2}")
        for h2 in range(2):
            A(f"v_pk_mul_f32 v[{a+2*h2}:{a+2*h2+1}], v[{a+2*h2}:{a+2*h2+1}], v[{GV}:{GV+1}] op_sel:[0,0] op_sel_hi:[1,0]")
            A(f"v_pk_mul_f32 v[{t+2+2*h2}:{t+3+2*h2}], v[{t+2+2*h2}:{t+3+2*h2}], v[{GV}:{GV+1}] op_sel:[0,1] op_sel_hi:[1,1]")
        for h2 in range(2):
            A(f"v_cvt_pk_bf16_f32 v{t+6+h2}, v{a+2*h2}, v{a+2*h2+1}")
            A(f"v_cvt_pk_bf16_f32 v{t+8+h2}, v{t+2+2*h2}, v{t+3+2*h2}")
        for h2 in range(2):
            A(f"v_lshlrev_b32 v{a+2*h2}, 16, v{t+6+h2}")
            A(f"v_and_b32 v{a+2*h2+1}, 0xffff0000, v{t+6+h2}")
            A(f"v_lshlrev_b32 v{t+2+2*h2}, 16, v{t+8+h2}")
            A(f"v_and_b32 v{t+3+2*h2}, 0xffff0000, v{t+8+h2}")
        for h2 in range(2):
            A(f"v_pk_add_f32 v[{a+2*h2}:{a+2*h2+1}], v[{a+2*h2}:{a+2*h2+1}], v[{t+2+2*h2}:{t+3+2*h2}]")
        A(f"v_cvt_pk_bf16_f32 v{96+2*q}, v{a}, v{a+1}")
        A(f"v_cvt_pk_bf16_f32 v{97+2*q}, v{a+2}, v{a+3}")
    A("""
  v_permlane32_swap_b32 v96, v98
  v_permlane32_swap_b32 v97, v99
  v_permlane32_swap_b32 v100, v102
  v_permlane32_swap_b32 v101, v103
  v_lshl_add_u32 v13, v4, 4, v6
  s_nop 1
  buffer_store_dwordx4 v[96:99], v13, s[20:23], s49 offen
  buffer_store_dwordx4 v[100:103], v13, s[20:23], s49 offen offset:32
  """)
    A.stamp(15)
    A.dump_stamps(16, "s[12:15]")
    A(f"{L('exit')}:")
    A("s_endpgm")
```

```python
from roleB import LOG2E, KVP_OFF, O_OFF, G_OFF, WS_SIZE
from roleA import softmax_feats
import stageF
SLOT = 45056
RED = 0
OST = 122880
KVF = 151552
GWL = 155648
FR = 64
ACK = 32; ACV = 48; AQ = 192
PHI = 240; IDF = 248

def mix(A, mf, others):
    n = len(mf); k = 0
    for i, m in enumerate(mf):
        A(m)
        tgt = (len(others) * (i + 1) + n - 1) // n
        while k < min(tgt, len(others)):
            A(others[k]); k += 1

class VM:
    def __init__(self): self.q = []
    def add(self, tag): self.q.append(tag)
    def wait(self, tag):
        idx = max(i for i, t in enumerate(self.q) if t == tag)
        n = len(self.q) - 1 - idx
        self.q = self.q[idx+1:]
        return n

def role_A(A):
    A.comment("================= ROLE A (v3) =================")
    A.stamp(0)
    A("""
  s_load_dwordx4 s[36:39], s[0:1], 0
  s_load_dwordx2 s[40:41], s[0:1], 16
  s_load_dwordx2 s[24:25], s[0:1], 104
  s_load_dwordx4 s[32:35], s[0:1], 120
  v_and_b32 v1, 63, v0
  v_lshrrev_b32 v2, 6, v0
  s_and_b32 s3, s2, 7
  s_lshr_b32 s4, s2, 3
  v_readfirstlane_b32 s6, v2
  s_lshr_b32 s5, s3, 1
  s_lshl_b32 s5, s5, 1
  s_and_b32 s42, s4, 1
  s_add_u32 s5, s5, s42
  s_and_b32 s7, s3, 1
  s_lshl_b32 s7, s7, 3
  s_lshr_b32 s42, s4, 1
  s_add_u32 s7, s7, s42
  """)
    A("""
  v_and_b32 v3, 31, v1
  v_lshrrev_b32 v4, 5, v1
  s_lshl_b32 s42, s5, 8
  s_lshl_b32 s43, s6, 5
  s_add_u32 s43, s42, s43
  v_add_u32 v5, s43, v3
  v_lshrrev_b32 v7, 3, v1
  v_and_b32 v8, 7, v1
  v_lshrrev_b32 v6, 4, v1
  v_xor_b32 v8, v8, v6
  v_mul_u32_u24 v6, 896, v7
  v_xor_b32 v7, 4, v8
  v_lshl_add_u32 v239, v7, 4, v6
  v_lshl_add_u32 v6, v8, 4, v6
  s_mul_i32 s44, s43, 896
  v_bfe_u32 v7, v1, 2, 3
  v_mul_u32_u24 v7, 2688, v7
  v_and_b32 v8, 3, v1
  v_lshl_add_u32 v7, v8, 4, v7
  v_mul_u32_u24 v8, 896, v4
  s_mul_i32 s45, s7, 56
  v_add3_u32 v7, v7, v8, s45
  s_mul_i32 s48, s6, 21504
  s_mul_i32 s49, s6, 1536
  s_lshl_b32 s50, s6, 12
  v_min_u32 v30, 447, v0
  v_lshlrev_b32 v30, 1, v30
  s_lshr_b32 s51, s4, 1
  s_and_b32 s54, s4, 1
  s_mul_i32 s54, s54, 3
  s_add_u32 s51, s51, s54
  s_sub_u32 s54, s51, 7
  s_cmp_ge_u32 s51, 7
  s_cselect_b32 s51, s54, s51
  s_sub_u32 s54, s51, 7
  s_cmp_ge_u32 s51, 7
  s_cselect_b32 s88, s54, s51
  """)
    for j in range(1, 7):
        A(f"s_add_u32 s{88+j}, s{88+j-1}, 1\ns_cmp_ge_u32 s{88+j}, 7\ns_cselect_b32 s{88+j}, 0, s{88+j}")
    A("""
  s_waitcnt lgkmcnt(0)
  s_mov_b32 s8, s36
  s_mov_b32 s9, s37
  s_mov_b32 s10, 1835008
  s_mov_b32 s11, 0x00020000
  s_mov_b32 s12, s34
  s_mov_b32 s13, s35
  s_mov_b32 s14, %d
  s_mov_b32 s15, 0x00020000
  s_mov_b32 s16, s38
  s_mov_b32 s17, s39
  s_mov_b32 s18, 1204224
  s_mov_b32 s19, 0x00020000
  s_mov_b32 s20, s40
  s_mov_b32 s21, s41
  s_mov_b32 s22, 25088
  s_mov_b32 s23, 0x00020000
  global_load_ushort v29, v30, s[24:25]
  """ % WS_SIZE)
    vm = VM(); vm.add("gw")
    def dma(c, E=A):
        slot = SLOT * (c % 3)
        E(f"s_mul_i32 s55, s{88+c}, 172032\ns_add_u32 s55, s55, s48\ns_add_u32 m0, s49, {slot + 32768}\ns_add_u32 s51, s55, 1792\nbuffer_load_dwordx4 v7, s[16:19], s55 offen lds")
        vm.add(f"w{c}")
        E(f"s_add_u32 m0, s49, {slot + 32768 + 1024}\ns_mov_b32 exec_hi, 0\nbuffer_load_dwordx4 v7, s[16:19], s51 offen lds\ns_mov_b32 exec_hi, -1")
        vm.add(f"w{c}")
        for j in range(4):
            E(f"s_add_u32 m0, s50, {slot + 1024*j}\ns_lshl_b32 s55, s{88+c}, 7\ns_add_u32 s55, s55, s44\ns_add_u32 s55, s55, {7168*j}\nbuffer_load_dwordx4 v{6 if j % 2 == 0 else 239}, s[8:11], s55 offen lds")
            vm.add(f"x{c}")
    dma(0)
    A("""
  s_or_b32 s51, s2, s6
  s_cmp_lg_u32 s51, 0
  s_cbranch_scc1 LA_notok
  s_memrealtime s[56:57]
  s_waitcnt lgkmcnt(0)
  s_or_b32 s56, s56, 1
  v_mov_b32 v2, s56
  v_mov_b32 v9, 0
  s_mov_b64 s[56:57], exec
  s_mov_b64 exec, 1
  global_store_dword v9, v2, s[32:33] sc1
  s_mov_b64 exec, s[56:57]
LA_notok:
  v_cmp_eq_u32 s[52:53], 1, v4
  v_mov_b32 v9, 1.0
  s_mov_b32 s47, 0x%x
  s_mov_b32 s46, 0x%x
  v_cndmask_b32 v9, v9, 0, s[52:53]
  v_lshlrev_b32 v31, 2, v4
  v_sub_u32 v31, v3, v31
  """ % (LOG2E, LOG2E))
    for s in range(2):
        for j in range(4):
            i0, i1 = 2 * j, 2 * j + 1
            f0 = 16 * s + (i0 & 3) + 8 * (i0 >> 2); f1 = 16 * s + (i1 & 3) + 8 * (i1 >> 2)
            r = IDF + 4 * s + j
            A(f"v_cmp_eq_u32 vcc, {f0}, v31")
            A(f"v_cmp_eq_u32 s[54:55], {f1}, v31")
            A(f"v_mov_b32 v2, 0x3f80")
            A(f"v_mov_b32 v30, 0x3f800000")
            A(f"v_cndmask_b32 v{r}, 0, v2, vcc")
            A(f"v_cndmask_b32 v{r}, v{r}, v30, s[54:55]")
    A("""
  v_and_b32 v2, 15, v1
  v_lshrrev_b32 v8, 4, v1
  v_lshrrev_b32 v31, 1, v8
  v_mul_u32_u24 v31, 1536, v31
  v_lshrrev_b32 v28, 2, v2
  v_lshl_add_u32 v31, v28, 6, v31
  v_and_b32 v8, 1, v8
  v_lshl_add_u32 v31, v8, 5, v31
  v_and_b32 v2, 3, v2
  v_lshl_add_u32 v8, v2, 3, v31
  v_add_u32 v8, 32768, v8
  v_bfe_u32 v2, v3, 1, 3
  v_lshlrev_b32 v28, 7, v3
  v_add_u32 v28, s50, v28
  """)
    XA = [240, 241, 242, 243]
    XB = [244, 245, 246, 247]
    for kk in range(4):
        A(f"v_add_u32 v{XA[kk]}, {2*kk}, v4")
        A(f"v_xor_b32 v{XA[kk]}, v{XA[kk]}, v2")
        A(f"v_lshl_add_u32 v{XA[kk]}, v{XA[kk]}, 4, v28")
    for i in range(16):
        A(f"v_mov_b32 v{ACK+i}, 0\nv_mov_b32 v{ACV+i}, 0\nv_mov_b32 v{AQ+i}, 0")
    A(f"""
  v_lshlrev_b32 v31, 4, v4
  v_add_u32 v31, {GWL}, v31
  s_mov_b32 s98, 0x20000000
  s_mov_b32 s99, 0x20000000
  """)
    PH = 12
    def small_loads(E):
        E("v_cmp_lt_u32 vcc, 27, v3\nv_subrev_u32 v10, 4, v3\ns_mul_i32 s51, s7, 1568\ns_nop 0\nv_cndmask_b32 v10, v3, v10, vcc\nv_lshlrev_b32 v10, 1, v10\nv_mul_u32_u24 v11, 224, v4\nv_add3_u32 v10, v10, v11, s51\nv_mov_b32 v11, 0x40000000\nv_cndmask_b32 v11, v10, v11, s[52:53]")
        for s in range(2):
            for i in range(8):
                cc = 16 * s + (i & 3) + 8 * (i >> 2)
                vo = 11 if (s == 1 and i >= 4) else 10
                E(f"buffer_load_ushort v{PH+8*s+i}, v{vo}, s[20:23], 0 offen offset:{cc*56}")
                vm.add("phi")
    def reads_list(c):
        L = []
        b = FR + 64 * (c & 1)
        slot = SLOT * (c % 3)
        for kk in range(4): L.append(f"v_add_u32 v{XB[kk]}, {slot}, v{XA[kk]}")
        L.append(f"v_add_u32 v28, {slot}, v8")
        L.append(f"s_lshl_b32 s51, s{88+c}, 7")
        L.append(f"v_add_u32 v30, s51, v31")
        for kk in range(4):
            L.append(f"ds_read_b128 v[{b+4*kk}:{b+4*kk+3}], v{XB[kk]}")
            for si in range(3):
                r = b + 16 + 16 * si + 4 * kk
                L.append(f"ds_read_b64_tr_b16 v[{r}:{r+1}], v28 offset:{3072*kk + 512*si}")
                L.append(f"ds_read_b64_tr_b16 v[{r+2}:{r+3}], v28 offset:{3072*kk + 512*si + 256}")
        g = ["s_mov_b64 exec, s[98:99]"]
        for kk in range(4):
            r = b + 16 + 4 * kk
            g.append(f"ds_read_b128 v[{r}:{r+3}], v30 offset:{32*kk}")
        g.append("s_mov_b64 exec, -1")
        L.append("\n".join(g))
        return L
    n = vm.wait("gw"); A(f"s_waitcnt vmcnt({n})")
    A(f"""
  v_lshlrev_b32 v2, 1, v0
  v_add_u32 v2, {GWL}, v2
  v_cmp_gt_u32 vcc, 448, v0
  s_and_saveexec_b64 s[56:57], vcc
  ds_write_b16 v2, v29
  s_mov_b64 exec, s[56:57]
  """)
    n = vm.wait("x0"); A(f"s_waitcnt vmcnt({n}) lgkmcnt(0)")
    A("s_barrier")
    A.stamp(1)
    dma(1)
    for x in reads_list(0): A(x)
    dma(2)
    for c in range(7):
        A("s_waitcnt lgkmcnt(0)")
        rl = []
        if c < 6:
            n = vm.wait(f"x{c+1}")
            A(f"s_waitcnt vmcnt({n})")
            A("s_barrier")
            rl = reads_list(c + 1)
        import os
        if os.environ.get("NOREADS"): rl = []
        late = []
        if c + 3 < 7: dma(c + 3, late.append)
        if c == 4: small_loads(late.append)
        b = FR + 64 * (c & 1)
        mf = []
        for kk in range(4):
            xr = b + 4 * kk
            mf.append(f"v_mfma_f32_32x32x16_bf16 v[{ACK}:{ACK+15}], v[{b+32+4*kk}:{b+32+4*kk+3}], v[{xr}:{xr+3}], v[{ACK}:{ACK+15}]")
            mf.append(f"v_mfma_f32_32x32x16_bf16 v[{ACV}:{ACV+15}], v[{xr}:{xr+3}], v[{b+48+4*kk}:{b+48+4*kk+3}], v[{ACV}:{ACV+15}]")
            mf.append(f"v_mfma_f32_32x32x16_bf16 v[{AQ}:{AQ+15}], v[{b+16+4*kk}:{b+16+4*kk+3}], v[{xr}:{xr+3}], v[{AQ}:{AQ+15}]")
        if os.environ.get("NOMFMA"):
            for x in rl: A(x)
        else: mix(A, mf, rl)
        for x in late: A(x)
    A.stamp(2)
    stageF.token_issue(A, 31)
    A("s_waitcnt vmcnt(1)")
    for s in range(2):
        for j in range(4):
            A(f"v_lshl_or_b32 v{PHI+4*s+j}, v{PH+8*s+2*j+1}, 16, v{PH+8*s+2*j}")
    KB = 64; PA = 72
    for j in range(8): A(f"v_cvt_pk_bf16_f32 v{KB+j}, v{ACK+2*j}, v{ACK+2*j+1}")
    A(f"v_mfma_f32_32x32x16_bf16 v[{PA}:{PA+15}], v[{PHI}:{PHI+3}], v[{KB}:{KB+3}], 0")
    A(f"v_mfma_f32_32x32x16_bf16 v[{PA}:{PA+15}], v[{PHI+4}:{PHI+7}], v[{KB+4}:{KB+7}], v[{PA}:{PA+15}]")
    VB = 12
    A("v_cmp_eq_u32 s[54:55], 28, v3")
    A("v_mov_b32 v2, 0x3f803f80")
    for j in range(8): A(f"v_cvt_pk_bf16_f32 v{VB+j}, v{ACV+2*j}, v{ACV+2*j+1}")
    for j in range(8): A(f"v_cndmask_b32 v{VB+j}, v{VB+j}, v2, s[54:55]")
    OP, OM = 32, 40
    softmax_feats(A, PA, OP, OM, 88)
    A.stamp(3)
    TP, TM = 64, 80
    for (src, dst) in ((OP, TP), (OM, TM)):
        A(f"v_mfma_f32_32x32x16_bf16 v[{dst}:{dst+15}], v[{src}:{src+3}], v[{IDF}:{IDF+3}], 0")
        A(f"v_mfma_f32_32x32x16_bf16 v[{dst}:{dst+15}], v[{src+4}:{src+7}], v[{IDF+4}:{IDF+7}], v[{dst}:{dst+15}]")
    TPp, TMp = 96, 104
    for (src, dst) in ((TP, TPp), (TM, TMp)):
        for j in range(8): A(f"v_cvt_pk_bf16_f32 v{dst+j}, v{src+2*j}, v{src+2*j+1}")
    for (src, dst) in ((TPp, TP), (TMp, TM)):
        A(f"v_mfma_f32_32x32x16_bf16 v[{dst}:{dst+15}], v[{src}:{src+3}], v[{VB}:{VB+3}], 0")
        A(f"v_mfma_f32_32x32x16_bf16 v[{dst}:{dst+15}], v[{src+4}:{src+7}], v[{VB+4}:{VB+7}], v[{dst}:{dst+15}]")
    A(f"""
  v_lshlrev_b32 v2, 4, v1
  s_lshl_b32 s48, s6, 13
  s_add_u32 s48, s48, {RED}
  v_add_u32 v10, s48, v2
  s_lshl_b32 s48, s6, 10
  v_add_u32 v26, s48, v2
  v_add_u32 v11, {RED}, v26
  s_barrier
  """)
    for q in range(8): A(f"ds_write_b128 v10, v[{64+4*q}:{64+4*q+3}] offset:{1024*q}")
    A("s_waitcnt lgkmcnt(0)")
    A("s_barrier")
    for ww in range(8):
        r = 64 + 4 * ww
        A(f"ds_read_b128 v[{r}:{r+3}], v11 offset:{8192*ww}")
    A("s_waitcnt lgkmcnt(0)")
    for lvl in (4, 8, 16):
        for b0 in range(64, 96, 2 * lvl):
            for i in (0, 2):
                A(f"v_pk_add_f32 v[{b0+i}:{b0+i+1}], v[{b0+i}:{b0+i+1}], v[{b0+lvl+i}:{b0+lvl+i+1}]")
    A.stamp(4)
    A(f"""
  s_lshl_b32 s49, s7, 16
  s_lshl_b32 s48, s5, 13
  s_add_u32 s48, s48, s49
  s_add_u32 s48, s48, {KVP_OFF}
  s_add_u32 s49, s49, {KVP_OFF}
  buffer_store_dwordx4 v[64:67], v26, s[12:15], s48 offen sc1
  s_waitcnt vmcnt(0)
  s_barrier
  s_cmp_lg_u32 s6, 0
  s_cbranch_scc1 LA_nopub
  """)
    stageF.get_token(A, "LA_tok", 31)
    A(f"""
  s_lshl_b32 s51, s7, 7
  s_add_u32 s51, s51, {stageF.FLKV}
  s_lshl_b32 s54, s5, 2
  s_add_u32 s54, s54, s51
  v_mov_b32 v2, s96
  v_mov_b32 v27, s54
  s_mov_b64 s[56:57], exec
  s_mov_b64 exec, 1
  buffer_store_dword v2, v27, s[12:15], 0 offen sc1
  s_mov_b64 exec, s[56:57]
  v_lshlrev_b32 v27, 2, v1
  v_add_u32 v27, s51, v27
LA_nopub:
  """)
    A.stamp(5)
    stageF.wo_prefetch(A, 0, 10, 11, "LA_nowo")
    A.stamp(6)
    for j in range(8): A(f"v_cvt_pk_bf16_f32 v{KB+j}, v{AQ+2*j}, v{AQ+2*j+1}")
    A(f"v_mfma_f32_32x32x16_bf16 v[{PA}:{PA+15}], v[{PHI}:{PHI+3}], v[{KB}:{KB+3}], 0")
    A(f"v_mfma_f32_32x32x16_bf16 v[{PA}:{PA+15}], v[{PHI+4}:{PHI+7}], v[{KB+4}:{KB+7}], v[{PA}:{PA+15}]")
    A(f"""
  v_and_b32 v10, 0xffff0000, v{KB+6}
  v_mul_f32 v10, s47, v10
  v_sub_f32 v10, 0, v10
  v_exp_f32 v10, v10
  v_add_f32 v10, 1.0, v10
  v_rcp_f32 v10, v10
  v_cvt_pk_bf16_f32 v10, v10, v10
  v_lshlrev_b32 v10, 16, v10
  v_lshlrev_b32 v11, 2, v5
  s_cmp_lg_u32 s7, 0
  s_cbranch_scc1 LA_nog
  s_mov_b64 s[56:57], exec
  s_mov_b64 exec, s[52:53]
  s_mov_b32 s48, {G_OFF}
  buffer_store_dword v10, v11, s[12:15], s48 offen sc1
  s_mov_b64 exec, s[56:57]
LA_nog:
  """)
    softmax_feats(A, PA, OP, OM, 88)
    A.stamp(7)
    A("""
  s_cmp_lg_u32 s6, 0
  s_cbranch_scc1 LA_nopoll
  """)
    stageF.poll_flags(A, "LA_poll", 8, 27, sleep=2)
    A("""
LA_nopoll:
  s_barrier
  """)
    A.stamp(8)
    PL = 64
    for pp in range(8):
        A(f"s_add_u32 s48, s49, {8192*pp}")
        A(f"buffer_load_dwordx4 v[{PL+4*pp}:{PL+4*pp+3}], v26, s[12:15], s48 offen sc1")
    A("s_waitcnt vmcnt(0)")
    for lvl in (4, 8, 16):
        for b0 in range(64, 96, 2 * lvl):
            for i in (0, 2):
                A(f"v_pk_add_f32 v[{b0+i}:{b0+i+1}], v[{b0+i}:{b0+i+1}], v[{b0+lvl+i}:{b0+lvl+i+1}]")
    A.stamp(9)
    A(f"""
  v_cvt_pk_bf16_f32 v72, v64, v65
  v_cvt_pk_bf16_f32 v73, v66, v67
  v_lshlrev_b32 v2, 4, v1
  s_lshr_b32 s48, s6, 1
  s_lshl_b32 s48, s48, 10
  s_and_b32 s51, s6, 1
  s_lshl_b32 s51, s51, 3
  s_add_u32 s48, s48, s51
  s_add_u32 s48, s48, {KVF}
  v_add_u32 v10, s48, v2
  ds_write_b64 v10, v[72:73]
  v_add_u32 v2, {KVF}, v2
  s_waitcnt lgkmcnt(0)
  s_barrier
  """)
    for fi in range(4): A(f"ds_read_b128 v[{80+4*fi}:{80+4*fi+3}], v2 offset:{1024*fi}")
    NUM = 96
    A("s_waitcnt lgkmcnt(0)")
    srcs = [OP, OP + 4, OM, OM + 4]
    for fi in range(4):
        c = "0" if fi == 0 else f"v[{NUM}:{NUM+15}]"
        A(f"v_mfma_f32_32x32x16_bf16 v[{NUM}:{NUM+15}], v[{80+4*fi}:{80+4*fi+3}], v[{srcs[fi]}:{srcs[fi]+3}], {c}")
    NBr = 112
    for j in range(8): A(f"v_cvt_pk_bf16_f32 v{NBr+j}, v{NUM+2*j}, v{NUM+2*j+1}")
    A(f"""
  v_lshlrev_b32 v10, 16, v{NBr+6}
  v_mov_b32 v11, v10
  v_permlane32_swap_b32 v11, v10
  v_add_f32 v10, 0x358637bd, v10
  v_cvt_pk_bf16_f32 v10, v10, v10
  v_lshlrev_b32 v10, 16, v10
  v_rcp_f32 v10, v10
  """)
    for j in range(8):
        A(f"v_lshlrev_b32 v{NUM+2*j}, 16, v{NBr+j}")
        A(f"v_and_b32 v{NUM+2*j+1}, 0xffff0000, v{NBr+j}")
    for j in range(8):
        A(f"v_pk_mul_f32 v[{NUM+2*j}:{NUM+2*j+1}], v[{NUM+2*j}:{NUM+2*j+1}], v[10:11] op_sel:[0,0] op_sel_hi:[1,0]")
    for j in range(8): A(f"v_cvt_pk_bf16_f32 v{NBr+j}, v{NUM+2*j}, v{NUM+2*j+1}")
    A(f"""
  v_cndmask_b32 v{NBr+6}, v{NBr+6}, 0, s[52:53]
  v_cndmask_b32 v{NBr+7}, v{NBr+7}, 0, s[52:53]
  v_lshlrev_b32 v2, 6, v3
  v_lshl_add_u32 v2, v4, 3, v2
  s_lshl_b32 s48, s6, 11
  s_add_u32 s48, s48, {OST}
  v_add_u32 v2, s48, v2
  v_lshlrev_b32 v11, 4, v1
  v_add_u32 v10, s48, v11
  """)
    for q in range(4):
        A(f"ds_write_b64 v2, v[{NBr+2*q}:{NBr+2*q+1}] offset:{16*q}")
    A(f"""
  s_lshl_b32 s48, s7, 17
  s_lshl_b32 s51, s43, 6
  s_add_u32 s48, s48, s51
  s_add_u32 s48, s48, {O_OFF}
  s_waitcnt lgkmcnt(0)
  ds_read_b128 v[96:99], v10
  ds_read_b128 v[100:103], v10 offset:1024
  s_waitcnt lgkmcnt(1)
  buffer_store_dwordx4 v[96:99], v11, s[12:15], s48 offen sc1
  s_waitcnt lgkmcnt(0)
  buffer_store_dwordx4 v[100:103], v11, s[12:15], s48 offen offset:1024 sc1
  """)
    A.stamp(10)
    A(f"""
  s_waitcnt vmcnt(0)
  s_barrier
  s_cmp_lg_u32 s6, 0
  s_cbranch_scc1 LA_nopub2
  v_lshlrev_b32 v27, 10, v1
  s_lshl_b32 s51, s5, 7
  s_lshl_b32 s54, s7, 2
  s_add_u32 s51, s51, s54
  s_add_u32 s51, s51, {stageF.FLF}
  v_mov_b32 v2, s96
  s_mov_b64 s[56:57], exec
  s_mov_b64 exec, 0xfffffff
  buffer_store_dword v2, v27, s[12:15], s51 offen sc1
  s_mov_b64 exec, s[56:57]
LA_nopub2:
  """)
    A.stamp(12)
    stageF.stage_F(A, 0, 57344, 122880, "A")
```

```python
from asmlib import Asm
import stageF

LOG2E = 0x3FB8AA3B
INV2PI = 0x3E22F983
XT_OFF = 0x000000
YT_OFF = 0x200000
KVP_OFF = 0x400000
O_OFF = 0x600000
G_OFF = 0x800000
WS_SIZE = 0x1000000
STG = 8704
CH_REG = 2 * STG
CPY = 4160
U_BASE = 4 * CH_REG
U_SZ = 4608
EX_BASE = U_BASE + 4 * U_SZ
B_LDS = EX_BASE + 8 * 2048
YST = 73728 + 8192

def interleave(*lists):
    out = []; idx = [0] * len(lists)
    while any(idx[i] < len(lists[i]) for i in range(len(lists))):
        for i, l in enumerate(lists):
            if idx[i] < len(l):
                out.append(l[idx[i]]); idx[i] += 1
    return out

def cmul(dst, z, w, t, conj=False):
    a = [f"v_pk_mul_f32 v[{t}:{t+1}], v[{z}:{z+1}], v[{w}:{w+1}] op_sel:[0,0] op_sel_hi:[1,0]"]
    if not conj:
        a.append(f"v_pk_fma_f32 v[{dst}:{dst+1}], v[{z}:{z+1}], v[{w}:{w+1}], v[{t}:{t+1}] op_sel:[1,1,0] op_sel_hi:[0,1,1] neg_lo:[1,0,0]")
    else:
        a.append(f"v_pk_fma_f32 v[{dst}:{dst+1}], v[{z}:{z+1}], v[{w}:{w+1}], v[{t}:{t+1}] op_sel:[1,1,0] op_sel_hi:[0,1,1] neg_hi:[1,0,0]")
    return a

def role_B(A, ABASE=128):
    A.comment("================= ROLE B (v2) =================")
    A.stamp(0)
    A(f"""
  s_sub_u32 s3, s2, {ABASE}
  s_load_dwordx2 s[40:41], s[0:1], 8
  s_and_b32 s4, s3, 7
  s_and_b32 s5, s3, 1
  s_mul_i32 s4, s4, 14
  s_lshr_b32 s3, s3, 3
  s_mul_i32 s43, s3, 86016
  s_mul_i32 s5, s5, 384
  s_add_u32 s43, s43, s5
  s_add_u32 s3, s3, s4
  s_load_dwordx8 s[16:23], s[0:1], 40
  s_load_dwordx4 s[24:27], s[0:1], 72
  s_load_dwordx2 s[28:29], s[0:1], 88
  s_load_dwordx4 s[32:35], s[0:1], 120
  s_load_dwordx2 s[36:37], s[0:1], 0
  v_and_b32 v1, 63, v0
  v_lshrrev_b32 v2, 6, v0
  s_nop 0
  v_readfirstlane_b32 s6, v2
  """)
    A("""
  s_lshr_b32 s38, s6, 1
  s_and_b32 s39, s6, 1
  s_lshl_b32 s7, s3, 2
  s_add_u32 s7, s7, s38
  s_mul_i32 s42, s6, %d
  """ % STG)
    A("""
  v_lshlrev_b32 v5, 2, v1
  s_lshl_b32 s44, s7, 9
  s_lshl_b32 s45, s39, 8
  s_add_u32 s44, s44, s45
  v_add_u32 v5, s44, v5
  s_lshl_b32 s45, s7, 1
  v_mov_b32 v6, s45
  v_mul_u32_u24 v3, 3584, v0
  s_lshl_b32 s45, s3, 3
  s_waitcnt lgkmcnt(0)
  s_mov_b32 s8, s36
  s_mov_b32 s9, s37
  s_mov_b32 s10, 1835008
  s_mov_b32 s11, 0x00020000
  s_mov_b32 s12, s34
  s_mov_b32 s13, s35
  s_mov_b32 s14, %d
  s_mov_b32 s15, 0x00020000
  global_load_dword v16, v5, s[16:17]
  global_load_dword v17, v5, s[18:19]
  global_load_dword v18, v5, s[20:21]
  global_load_dword v19, v5, s[22:23]
  global_load_dword v20, v5, s[24:25]
  global_load_dword v21, v5, s[26:27]
  global_load_ushort v22, v6, s[28:29]
  s_mov_b32 s43, s45
  """ % WS_SIZE)
    A("""
  v_lshlrev_b32 v11, 2, v1
  v_add_u32 v11, s42, v11
  v_and_b32 v12, 31, v1
  v_mul_u32_u24 v12, 272, v12
  v_lshrrev_b32 v13, 5, v1
  v_lshl_add_u32 v12, v13, 4, v12
  v_add_u32 v12, s42, v12
  s_mov_b32 s47, 0x%x
  s_mov_b32 s48, 0x%x
  s_waitcnt vmcnt(0)
  """ % (LOG2E, INV2PI))
    A.stamp(2)
    A("""
  v_lshlrev_b32 v22, 16, v22
  v_mul_f32 v22, s47, v22
  v_exp_f32 v22, v22
  v_cvt_pk_bf16_f32 v22, v22, v22
  v_lshlrev_b32 v22, 16, v22
  """)
    ACC = 96
    for i in range(16): A(f"v_mov_b32 v{ACC+i}, 0")
    A("s_mov_b32 s49, 0")
    A.label("LB_pass")
    ar, th, dbr, dbi = 32, 33, 34, 35
    W, E, E2, E4, E8, G = 36, 38, 40, 42, 44, 46
    t0, t1, t2 = 48, 50, 52
    Z1, Z2, Z3, Z4 = 54, 56, 58, 60
    P = 62
    c1, c2, c3, c4 = 64, 65, 66, 67
    AF = 112
    BF = 144
    A(f"""
  v_lshlrev_b32 v{ar}, 16, v16
  v_lshlrev_b32 v{th}, 16, v17
  v_lshlrev_b32 v{dbr}, 16, v18
  v_lshlrev_b32 v{dbi}, 16, v19
  v_lshlrev_b32 v{t0}, 16, v20
  v_lshlrev_b32 v{t0+1}, 16, v21
  v_mul_f32 v{ar}, v{ar}, v22
  v_mul_f32 v{th}, v{th}, v22
  v_mul_f32 v{dbr}, v{dbr}, v22
  v_mul_f32 v{dbi}, v{dbi}, v22
  v_mul_f32 v{ar}, s47, v{ar}
  v_mul_f32 v{th}, s48, v{th}
  """)
    A("\n".join(cmul(W, t0, dbr, t1)))
    def cis(dst, l, m, ph):
        return [f"v_mul_f32 v{m}, {l}, v{ar}" if isinstance(l, str) else f"v_mul_f32 v{m}, {float(l)}, v{ar}",
                f"v_mul_f32 v{ph}, {l}, v{th}" if isinstance(l, str) else f"v_mul_f32 v{ph}, {float(l)}, v{th}",
                f"v_exp_f32 v{m}, v{m}",
                f"v_fract_f32 v{ph}, v{ph}",
                f"v_cos_f32 v{dst}, v{ph}",
                f"v_sin_f32 v{dst+1}, v{ph}",
                f"v_pk_mul_f32 v[{dst}:{dst+1}], v[{dst}:{dst+1}], v[{m}:{m+1}] op_sel:[0,0] op_sel_hi:[1,0]"]
    import struct
    fl = lambda x: "0x%08x" % struct.unpack('<I', struct.pack('<f', x))[0]
    l1 = cis(E, fl(1.0), t0, t0+1); l8 = cis(E8, fl(8.0), t1, t1+1); l256 = cis(G, fl(256.0), t2, t2+1)
    for x in interleave(l1, l8, l256): A(x)
    A("\n".join(cmul(E2, E, E, t0)))
    A("\n".join(cmul(E4, E2, E2, t0)))
    def wr(z, rows, tmp):
        o = [f"v_cvt_pk_bf16_f32 v{tmp}, v{z}, v{z+1}"]
        for r in rows: o.append(f"ds_write_b32 v11, v{tmp} offset:{r*272}")
        return o
    ch1 = wr(W, [0], c1)
    prev = W
    for p in range(1, 8):
        ch1 += cmul(Z1, prev, E, t0) + wr(Z1, [p], c1); prev = Z1
    P256, P512, P768, PX = 68, 70, 72, 74
    pre = cmul(P256, W, G, t1) + cmul(P512, P256, G, t1) + cmul(P768, P512, G, t1)
    ch2 = wr(P256, [8], c2) + cmul(Z2, P256, E2, t1) + wr(Z2, [9], c2) + cmul(Z2, Z2, E2, t1) + wr(Z2, [10, 12], c2) \
        + cmul(Z2, Z2, E2, t1) + wr(Z2, [13], c2) + cmul(Z2, Z2, E2, t1) + wr(Z2, [14], c2)
    ch3 = wr(P512, [16], c3) + cmul(Z3, P512, E4, t2) + wr(Z3, [17, 20], c3) + cmul(Z3, Z3, E4, t2) + wr(Z3, [21], c3) \
        + wr(P768, [18], c3) + cmul(Z3, P768, E4, t2) + wr(Z3, [19, 22], c3) + cmul(Z3, Z3, E4, t2) + wr(Z3, [23], c3)
    t3 = 76
    ch4 = []
    prevp = P768
    for i in range(4):
        ch4 += cmul(PX, prevp, G, t3) + wr(PX, [24 + i], c4) + cmul(Z4, PX, E8, t3) + wr(Z4, [28 + i], c4)
        prevp = PX
    for x in pre: A(x)
    for x in interleave(ch1, ch2, ch3, ch4): A(x)
    A("s_waitcnt lgkmcnt(0)")
    for s in range(8): A(f"ds_read_b128 v[{AF+4*s}:{AF+4*s+3}], v12 offset:{32*s}")
    E16, E32, E64 = 36, 38, 40
    A("\n".join(cmul(E16, E8, E8, t0)))
    A("\n".join(cmul(E32, E16, E16, t0)))
    A("\n".join(cmul(E64, E32, E32, t0)))
    S8, S16, S24 = 42, 46, 68
    A("\n".join(cmul(S16, E64, E64, t0)))
    A("\n".join(cmul(S24, S16, E64, t0)))
    A(f"v_mov_b32 v{S8}, v{E64}")
    A(f"v_xor_b32 v{S8+1}, 0x80000000, v{E64+1}")
    A(f"v_xor_b32 v{S16+1}, 0x80000000, v{S16+1}")
    A(f"v_xor_b32 v{S24+1}, 0x80000000, v{S24+1}")
    A(f"v_mov_b32 v{Z1}, 1.0")
    A(f"v_mov_b32 v{Z1+1}, 0")
    A("s_waitcnt lgkmcnt(0)")
    ys = []
    for ci, (z, start, tt, cc) in enumerate([(Z1, Z1, t0, c1), (Z2, S8, t1, c2), (Z3, S16, t2, c3), (Z4, S24, t3, c4)]):
        l = wr(start, [8 * ci], cc)
        prev = start
        for j in range(1, 8):
            l += cmul(z, prev, E8, tt, conj=True) + wr(z, [8 * ci + j], cc); prev = z
        ys.append(l)
    for x in interleave(*ys): A(x)
    A("s_waitcnt lgkmcnt(0)")
    for s in range(8): A(f"ds_read_b128 v[{BF+4*s}:{BF+4*s+3}], v12 offset:{32*s}")
    for s in range(8):
        A(f"s_waitcnt lgkmcnt({7-s})")
        A(f"v_mfma_f32_32x32x16_bf16 v[{ACC}:{ACC+15}], v[{AF+4*s}:{AF+4*s+3}], v[{BF+4*s}:{BF+4*s+3}], v[{ACC}:{ACC+15}]")
    for i in range(16, 22): A(f"v_lshrrev_b32 v{i}, 16, v{i}")
    A("""
  s_cmp_lg_u32 s49, 0
  s_cbranch_scc1 LB_nogather
  buffer_load_dwordx2 v[80:81], v3, s[8:11], s43 offen
  buffer_load_dwordx2 v[82:83], v3, s[8:11], s43 offen offset:896
  buffer_load_dwordx2 v[84:85], v3, s[8:11], s43 offen offset:1792
  buffer_load_dwordx2 v[86:87], v3, s[8:11], s43 offen offset:2688
LB_nogather:
  """)
    A("""
  s_add_u32 s49, s49, 1
  s_cmp_lt_u32 s49, 2
  s_cbranch_scc1 LB_pass
  """)
    A.stamp(3)
    A(f"""
  v_lshlrev_b32 v2, 4, v1
  s_lshl_b32 s45, s6, 11
  s_add_u32 s45, s45, {EX_BASE}
  v_add_u32 v3, s45, v2
  s_xor_b32 s46, s6, 1
  s_lshl_b32 s46, s46, 11
  s_add_u32 s46, s46, {EX_BASE}
  v_add_u32 v4, s46, v2
  s_nop 7
  s_nop 7
  s_cmp_eq_u32 s39, 0
  s_cbranch_scc1 LB_ex0
  ds_write_b128 v3, v[{ACC}:{ACC+3}]
  ds_write_b128 v3, v[{ACC+4}:{ACC+7}] offset:1024
  s_branch LB_ex1
LB_ex0:
  ds_write_b128 v3, v[{ACC+8}:{ACC+11}]
  ds_write_b128 v3, v[{ACC+12}:{ACC+15}] offset:1024
LB_ex1:
  s_waitcnt lgkmcnt(0)
  s_barrier
  """)
    A.stamp(4)
    A(f"""
  ds_read_b128 v[24:27], v4
  ds_read_b128 v[28:31], v4 offset:1024
  s_mov_b32 s45, 0x05040100
  s_mov_b32 s46, 0x07060302
  s_waitcnt vmcnt(0)
  v_perm_b32 v88, v82, v80, s45
  v_perm_b32 v89, v86, v84, s45
  v_perm_b32 v90, v82, v80, s46
  v_perm_b32 v91, v86, v84, s46
  v_perm_b32 v92, v83, v81, s45
  v_perm_b32 v93, v87, v85, s45
  v_perm_b32 v94, v83, v81, s46
  v_perm_b32 v95, v87, v85, s46
  v_lshlrev_b32 v8, 3, v0
  v_add_u32 v8, {U_BASE + 512}, v8
  ds_write_b64 v8, v[88:89]
  ds_write_b64 v8, v[90:91] offset:{U_SZ}
  ds_write_b64 v8, v[92:93] offset:{2*U_SZ}
  ds_write_b64 v8, v[94:95] offset:{3*U_SZ}
  v_and_b32 v9, 31, v1
  v_lshrrev_b32 v10, 5, v1
  s_mul_i32 s46, s38, {CH_REG}
  v_lshlrev_b32 v13, 4, v9
  v_lshl_add_u32 v13, v10, 3, v13
  v_sub_u32 v13, {2*2044}, v13
  v_add_u32 v13, s46, v13
  v_cmp_eq_u32 s[52:53], 1, v10
  s_cmp_eq_u32 s39, 1
  s_waitcnt lgkmcnt(4)
  s_cbranch_scc1 LB_w1
  """)
    for i in range(8): A(f"v_add_f32 v{24+i}, v{24+i}, v{ACC+i}")
    A(f"""
  v_cvt_pk_bf16_f32 v32, v27, v26
  v_cvt_pk_bf16_f32 v33, v25, v24
  v_cvt_pk_bf16_f32 v34, v30, v29
  v_cvt_pk_bf16_f32 v35, v28, v28
  v_subrev_u32 v14, 512, v13
  ds_write_b64 v13, v[32:33]
  ds_write_b64 v14, v[34:35]
  v_mov_b32 v36, 0
  v_mov_b32 v37, 0
  v_lshlrev_b32 v14, 3, v1
  v_add_u32 v14, s46, v14
  s_mov_b64 s[50:51], exec
  s_mov_b64 exec, 0xff
  ds_write_b64 v14, v[36:37] offset:4096
  s_mov_b64 exec, s[50:51]
  s_branch LB_w2
LB_w1:
  """)
    for i in range(8): A(f"v_add_f32 v{24+i}, v{24+i}, v{ACC+8+i}")
    A("""
  v_cndmask_b32 v32, v24, v25, s[52:53]
  v_cndmask_b32 v33, v26, v27, s[52:53]
  v_cvt_pk_bf16_f32 v34, v25, v32
  v_cvt_pk_bf16_f32 v35, v24, v24
  v_cvt_pk_bf16_f32 v36, v27, v33
  v_cvt_pk_bf16_f32 v37, v26, v26
  v_subrev_u32 v14, 1024, v13
  ds_write_b64 v14, v[34:35]
  v_subrev_u32 v14, 1536, v13
  ds_write_b64 v14, v[36:37]
  v_and_b32 v14, 1, v9
  v_and_b32 v14, v14, v10
  v_cmp_eq_u32 s[54:55], 1, v14
  """)
    for i in range(4):
        f = 28 + i
        A(f"""
  v_mov_b32 v38, v{f}
  v_mov_b32 v39, v{f}
  v_permlane32_swap_b32 v38, v39
  v_cndmask_b32 v38, v38, v{f}, s[54:55]
  v_cvt_pk_bf16_f32 v{40+2*i}, v{f}, v{f}
  v_cvt_pk_bf16_f32 v{41+2*i}, v{f}, v38
  v_subrev_u32 v14, {2048 + 512*i}, v13
  ds_write_b64 v14, v[{40+2*i}:{41+2*i}]
  """)
    A.label("LB_w2")
    A(f"""
  v_mov_b32 v36, 0
  v_mov_b32 v37, 0
  v_mov_b32 v38, 0
  v_mov_b32 v39, 0
  v_lshrrev_b32 v5, 5, v0
  v_and_b32 v6, 31, v0
  v_mul_u32_u24 v14, {U_SZ}, v5
  v_lshl_add_u32 v14, v6, 4, v14
  v_add_u32 v14, {U_BASE}, v14
  v_cmp_gt_u32 vcc, 128, v0
  s_and_saveexec_b64 s[50:51], vcc
  ds_write_b128 v14, v[36:39]
  s_mov_b64 exec, s[50:51]
  s_waitcnt lgkmcnt(0)
  s_barrier
  """)
    A.stamp(5)
    stageF.wo_prefetch(A, 104448, 46, 47, "LB_nowo")
    A("""
  v_lshlrev_b32 v46, 3, v1
  v_add_u32 v46, 161792, v46
  ds_write_b64 v46, v[36:37]
  """)
    A(f"""
  s_lshl_b32 s45, s39, 10
  s_add_u32 s45, s45, s46
  v_lshlrev_b32 v14, 4, v1
  v_add_u32 v14, s45, v14
  ds_read_b128 v[24:27], v14
  ds_read_b64 v[28:29], v14 offset:16
  ds_read_b128 v[40:43], v14 offset:2048
  ds_read_b64 v[44:45], v14 offset:2064
  v_and_b32 v15, 1, v1
  v_lshlrev_b32 v15, 4, v15
  v_add_u32 v15, s46, v15
  ds_write_b128 v15, v[36:39] offset:{4096 + CPY}
  ds_write_b128 v15, v[36:39] offset:{4096 + 2*CPY}
  ds_write_b128 v15, v[36:39] offset:{4096 + 3*CPY}
  """)
    for (d, off, wait) in ((24, 0, 5), (40, 2048, 3)):
        A(f"s_waitcnt lgkmcnt({wait})")
        o1, o3 = 48, 52
        for k in range(4): A(f"v_alignbit_b32 v{o1+k}, v{d+k+1}, v{d+k}, 16")
        for k in range(4): A(f"v_alignbit_b32 v{o3+k}, v{d+k+2}, v{d+k+1}, 16")
        A(f"v_mov_b32 v56, v{d+1}\nv_mov_b32 v57, v{d+2}\nv_mov_b32 v58, v{d+3}\nv_mov_b32 v59, v{d+4}")
        A(f"ds_write_b128 v14, v[{o1}:{o1+3}] offset:{off + CPY}")
        A(f"ds_write_b128 v14, v[56:59] offset:{off + 2*CPY}")
        A(f"ds_write_b128 v14, v[{o3}:{o3+3}] offset:{off + 3*CPY}")
        A("s_nop 1")
    A(f"""
  v_and_b32 v2, 15, v1
  v_lshrrev_b32 v3, 4, v1
  v_and_b32 v4, 3, v2
  v_sub_u32 v4, 3, v4
  v_mul_u32_u24 v4, {CPY}, v4
  v_lshrrev_b32 v5, 2, v2
  v_lshlrev_b32 v5, 3, v5
  v_lshlrev_b32 v6, 4, v3
  v_sub_u32 v6, v6, v5
  v_add_u32 v6, {2*2028 - 64*63}, v6
  v_add3_u32 v4, v4, v6, s46
  s_mul_i32 s45, s38, {U_SZ}
  v_lshlrev_b32 v5, 5, v2
  v_lshl_add_u32 v5, v3, 4, v5
  v_add_u32 v5, {U_BASE + 32}, v5
  v_add_u32 v5, s45, v5
  v_lshlrev_b32 v6, 5, v2
  v_lshl_add_u32 v6, v3, 3, v6
  s_lshl_b32 s45, s7, 12
  s_add_u32 s45, s45, {YT_OFF}
  s_waitcnt lgkmcnt(0)
  s_barrier
  """)
    A.stamp(6)
    stageF.token_issue(A, 15)
    A("""
  s_cmp_eq_u32 s39, 1
  s_cbranch_scc1 LB_convB
  """)
    conv(A, [7, 6, 2], "A")
    A("s_branch LB_end")
    A.label("LB_convB")
    conv(A, [5, 4, 3, 1, 0], "B")
    A.label("LB_end")
    A.stamp(7)
    A(f"""
  s_waitcnt vmcnt(0)
  s_barrier
  s_cmp_lg_u32 s6, 0
  s_cbranch_scc1 LB_nopub2
  """)
    stageF.get_token(A, "LB_tok", 15)
    A(f"""
  s_lshr_b32 s51, s3, 4
  s_lshl_b32 s51, s51, 12
  s_and_b32 s54, s3, 15
  s_lshl_b32 s54, s54, 2
  s_add_u32 s51, s51, s54
  s_add_u32 s51, s51, {stageF.FLF + 64}
  v_and_b32 v27, 3, v1
  v_lshlrev_b32 v27, 10, v27
  v_lshrrev_b32 v16, 2, v1
  v_lshl_add_u32 v27, v16, 7, v27
  v_mov_b32 v2, s96
  s_mov_b64 s[56:57], exec
  s_mov_b32 exec_hi, 0
  buffer_store_dword v2, v27, s[12:15], s51 offen sc1
  s_mov_b64 exec, s[56:57]
LB_nopub2:
  """)
    A.stamp(12)
    import os
    if os.environ.get("BNOF"): A("s_sleep 127\ns_sleep 127\ns_sleep 127")
    stageF.stage_F(A, 104448, 0, 65536, "B")

def conv(A, ns, tag):
    kmax = max(ns)
    ACC = {n: 16 + 4 * i for i, n in enumerate(ns)}
    for n in ns:
        for r in range(4): A(f"v_mov_b32 v{ACC[n]+r}, 0")
    BSET = [40, 72]
    APOOL = [104 + 4 * i for i in range(6)]
    loads = []
    mf = []
    seq = []
    lid = 0
    loadinfo = {}
    order = []
    apool_i = 0
    for D in range(8):
        bid = {}
        for k in range(kmax + 1):
            m = 8 * k + D
            areg = APOOL[apool_i % len(APOOL)]; apool_i += 1
            loadinfo[lid] = ('A', areg, 64 * (63 - m)); aid = lid; lid += 1
            need_first = True
            for n in sorted(ns, reverse=True):
                if k > n: continue
                j = n - k
                if j not in bid:
                    sigma = 8 * j - D
                    loadinfo[lid] = ('B', BSET[D & 1] + 4 * j, 64 * (sigma + 7)); bid[j] = lid; lid += 1
                order.append((ACC[n], aid, bid[j]))
    first = {}
    for i, (acc, a, b) in enumerate(order):
        first.setdefault(a, i); first.setdefault(b, i)
    lseq = sorted(loadinfo, key=lambda x: (first[x], x))
    ninstr = {x: (2 if loadinfo[x][0] == 'A' else 1) for x in loadinfo}
    lastuse = {}
    for i, (acc, a, b) in enumerate(order):
        lastuse[a] = i; lastuse[b] = i
    prev_same = {}
    seen = {}
    for x in lseq:
        reg = loadinfo[x][1]
        prev_same[x] = seen.get(reg)
        seen[reg] = x
    issued = []
    li = 0
    LOOK = 12
    def outstanding_after(x):
        idx = issued.index(x)
        return sum(ninstr[y] for y in issued[idx+1:])
    done_upto = -1
    for i, (acc, a, b) in enumerate(order):
        while li < len(lseq):
            x = lseq[li]
            ps = prev_same[x]
            if ps is not None and lastuse[ps] >= i: break
            out = sum(ninstr[y] for y in issued[done_upto+1:])
            if out + ninstr[x] > LOOK and first[x] > i: break
            kind, reg, off = loadinfo[x]
            if kind == 'A':
                A(f"ds_read_b64 v[{reg}:{reg+1}], v4 offset:{off}")
                A(f"ds_read_b64 v[{reg+2}:{reg+3}], v4 offset:{off+8}")
            else:
                A(f"ds_read_b128 v[{reg}:{reg+3}], v5 offset:{off}")
            issued.append(x); li += 1
        needx = max(issued.index(a), issued.index(b))
        if needx > done_upto:
            A(f"s_waitcnt lgkmcnt({outstanding_after(issued[needx])})")
            done_upto = needx
        ar = loadinfo[a][1]; br = loadinfo[b][1]
        A(f"v_mfma_f32_16x16x32_bf16 v[{acc}:{acc+3}], v[{ar}:{ar+3}], v[{br}:{br+3}], v[{acc}:{acc+3}]")
    A(f"s_lshl_b32 s46, s38, 12\ns_mul_i32 s47, s39, 1536\ns_add_u32 s46, s46, s47\ns_add_u32 s46, s46, {EX_BASE}\nv_add_u32 v7, s46, v6\nv_lshlrev_b32 v8, 4, v1\nv_add_u32 v9, s46, v8")
    for i, n in enumerate(ns):
        a = ACC[n]
        A(f"v_cvt_pk_bf16_f32 v{a}, v{a}, v{a+1}")
        A(f"v_cvt_pk_bf16_f32 v{a+1}, v{a+2}, v{a+3}")
        A(f"ds_write_b64 v7, v[{a}:{a+1}] offset:{512*i}")
    A("s_waitcnt lgkmcnt(0)")
    k = 0
    while k < len(ns):
        if k + 1 < len(ns):
            n0, n1 = ns[k], ns[k + 1]
            A(f"ds_read_b128 v[40:43], v9 offset:{512*k}")
            A(f"v_and_b32 v10, 31, v1\nv_lshlrev_b32 v10, 4, v10\nv_mov_b32 v11, {512*n0}\nv_mov_b32 v12, {512*n1}\nv_cmp_lt_u32 vcc, 31, v1\nv_cndmask_b32 v11, v11, v12, vcc\nv_add_u32 v10, v10, v11")
            A("s_waitcnt lgkmcnt(0)")
            A("buffer_store_dwordx4 v[40:43], v10, s[12:15], s45 offen sc1")
            A("s_nop 1")
            k += 2
        else:
            n0 = ns[k]
            A(f"s_mov_b64 s[50:51], exec\ns_mov_b32 exec_hi, 0")
            A(f"ds_read_b128 v[44:47], v9 offset:{512*k}")
            A("s_waitcnt lgkmcnt(0)")
            A(f"buffer_store_dwordx4 v[44:47], v8, s[12:15], s45 offen offset:{512*n0} sc1")
            A("s_mov_b64 exec, s[50:51]")
            k += 1
```

```python
from roleB import YT_OFF, O_OFF, G_OFF, WS_SIZE
FLF = 0x900000
FLX = 0x918000
FLKV = 0x910000

def token_issue(A, vt):
    A(f"v_mov_b32 v{vt}, 0\nglobal_load_dword v{vt}, v{vt}, s[32:33] sc1")

def get_token(A, lab, vt):
    A(f"""
  v_readfirstlane_b32 s96, v{vt}
  s_cmp_lg_u32 s96, 0
  s_cbranch_scc1 {lab}_ok
  v_mov_b32 v16, 0
  s_mov_b32 s51, 0
{lab}:
  global_load_dword v2, v16, s[32:33] sc1
  s_waitcnt vmcnt(0)
  v_readfirstlane_b32 s96, v2
  s_cmp_lg_u32 s96, 0
  s_cbranch_scc1 {lab}_ok
  s_sleep 4
  s_add_u32 s51, s51, 1
  s_cmp_lt_u32 s51, 0x20000
  s_cbranch_scc1 {lab}
{lab}_ok:
  """)

def poll_flags(A, lab, nl, voff, sleep=4):
    mask = (1 << nl) - 1
    A(f"""
  s_mov_b32 s51, 0
  s_mov_b64 s[56:57], exec
  s_mov_b64 exec, {hex(mask)}
{lab}:
  buffer_load_dword v18, v{voff}, s[12:15], 0 offen sc1
  s_waitcnt vmcnt(0)
  v_cmp_ne_u32 vcc, s96, v18
  s_cbranch_vccz {lab}_ok
  s_sleep {sleep}
  s_add_u32 s51, s51, 1
  s_cmp_lt_u32 s51, 0x20000
  s_cbranch_scc1 {lab}
{lab}_ok:
  s_mov_b64 exec, s[56:57]
  """)

def f_setup(A):
    A("""
  s_load_dwordx2 s[80:81], s[0:1], 24
  s_and_b32 s84, s2, 7
  s_lshr_b32 s85, s2, 3
  s_lshl_b32 s84, s84, 2
  s_and_b32 s86, s85, 3
  s_add_u32 s86, s84, s86
  s_lshr_b32 s84, s85, 2
  s_mov_b32 s85, s86
  s_mov_b32 s82, 401408
  s_mov_b32 s83, 0x00020000
  """)

def wo_prefetch(A, WOB, va, vb, lab):
    A(f"""
  s_cmp_ge_u32 s2, 224
  s_cbranch_scc1 {lab}
  v_lshrrev_b32 v{va}, 3, v1
  v_bfe_u32 v{vb}, v1, 4, 1
  v_lshlrev_b32 v{vb}, 2, v{vb}
  v_xor_b32 v{vb}, v{vb}, v1
  v_and_b32 v{vb}, 7, v{vb}
  v_mul_u32_u24 v{va}, 896, v{va}
  v_lshl_add_u32 v{va}, v{vb}, 4, v{va}
  s_lshl_b32 s86, s84, 7
  s_mul_i32 s87, s6, 7168
  s_add_u32 s86, s86, s87
  s_lshl_b32 s87, s6, 10
  """)
    for i in range(7):
        A(f"s_add_u32 m0, s87, {WOB + 8192*i}")
        A(f"s_add_u32 s95, s86, {57344*i}")
        A(f"buffer_load_dwordx4 v{va}, s[80:83], s95 offen lds")
    A(f"{lab}:")

def stage_F(A, WOB, OB, YB, tag):
    from roleA3 import mix
    L = lambda n: f"LF{tag}_{n}"
    EXF = YB + 8192
    A(f"""
  s_cmp_ge_u32 s2, 224
  s_cbranch_scc1 {L('exit')}
  s_load_dwordx2 s[36:37], s[0:1], 0
  s_load_dwordx2 s[40:41], s[0:1], 96
  s_load_dwordx2 s[38:39], s[0:1], 112
  v_and_b32 v1, 63, v0
  v_and_b32 v3, 31, v1
  v_lshrrev_b32 v4, 5, v1
  s_and_b32 s43, s6, 1
  s_bfe_u32 s44, s6, 0x10001
  s_lshr_b32 s42, s6, 2
  s_lshl_b32 s45, s85, 6
  s_lshl_b32 s46, s43, 5
  s_add_u32 s46, s45, s46
  v_add_u32 v5, s46, v3
  v_mul_u32_u24 v6, 896, v5
  v_lshrrev_b32 v8, 3, v1
  v_and_b32 v9, 7, v1
  v_lshrrev_b32 v10, 4, v1
  v_xor_b32 v10, v10, v1
  v_and_b32 v10, 3, v10
  v_lshrrev_b32 v11, 2, v1
  v_lshlrev_b32 v11, 6, v11
  v_lshl_add_u32 v11, v10, 4, v11
  v_bfe_u32 v10, v8, 1, 1
  v_lshlrev_b32 v10, 2, v10
  v_xor_b32 v10, v10, v9
  v_lshlrev_b32 v12, 12, v8
  v_lshl_add_u32 v12, v10, 4, v12
  s_waitcnt lgkmcnt(0)
  s_mov_b32 s8, s36
  s_mov_b32 s9, s37
  s_mov_b32 s10, 1835008
  s_mov_b32 s11, 0x00020000
  s_mov_b32 s20, s38
  s_mov_b32 s21, s39
  s_mov_b32 s22, 1835008
  s_mov_b32 s23, 0x00020000
  """)
    ACC, XV, DV, GV, YV = 128, 144, 148, 152, 154
    A(f"""
  s_lshl_b32 s49, s84, 7
  s_lshl_b32 s51, s44, 6
  s_add_u32 s49, s49, s51
  s_lshl_b32 s51, s42, 5
  s_add_u32 s49, s49, s51
  v_lshl_add_u32 v13, v4, 3, v6
  v_lshlrev_b32 v14, 3, v4
  v_add_u32 v14, s49, v14
  v_lshlrev_b32 v15, 2, v5
  """)
    for q in range(2):
        A(f"buffer_load_dwordx2 v[{XV+2*q}:{XV+2*q+1}], v13, s[8:11], s49 offen offset:{16*q}")
    for q in range(2):
        A(f"global_load_dwordx2 v[{DV+2*q}:{DV+2*q+1}], v14, s[40:41] offset:{16*q}")
    A(f"""
  s_cmp_lg_u32 s6, 0
  s_cbranch_scc1 {L('nopoll')}
  s_lshl_b32 s47, s2, 7
  s_add_u32 s47, s47, {FLF}
  v_lshlrev_b32 v16, 2, v1
  v_add_u32 v16, s47, v16
  """)
    poll_flags(A, L('poll'), 32, 16)
    A(f"""
{L('nopoll')}:
  s_barrier
  """)
    A.stamp(13)
    A(f"""
  s_lshl_b32 s47, s6, 18
  s_lshl_b32 s51, s45, 6
  s_add_u32 s47, s47, s51
  s_add_u32 s47, s47, {O_OFF}
  s_lshl_b32 s48, s6, 13
  """)
    for hh_ in range(2):
        for j in range(4):
            A(f"s_add_u32 m0, s48, {OB + 4096*hh_ + 1024*j}")
            A(f"s_add_u32 s51, s47, {131072*hh_ + 1024*j}")
            A("buffer_load_dwordx4 v11, s[12:15], s51 offen sc1 lds")
    A(f"""
  s_lshl_b32 s48, s6, 10
  s_lshl_b32 s47, s84, 18
  s_lshl_b32 s51, s85, 7
  s_add_u32 s47, s47, s51
  s_lshl_b32 s51, s6, 15
  s_add_u32 s47, s47, s51
  s_add_u32 s47, s47, {YT_OFF}
  s_add_u32 m0, s48, {YB}
  s_mov_b32 s51, {G_OFF}
  buffer_load_dwordx4 v12, s[12:15], s47 offen sc1 lds
  buffer_load_dword v{GV}, v15, s[12:15], s51 offen sc1
  v_and_b32 v2, 15, v1
  v_lshrrev_b32 v8, 4, v1
  v_lshrrev_b32 v9, 1, v8
  v_lshlrev_b32 v9, 3, v9
  v_lshrrev_b32 v10, 2, v2
  v_add_u32 v9, v9, v10
  v_lshlrev_b32 v9, 7, v9
  v_and_b32 v8, 1, v8
  v_lshl_add_u32 v9, v8, 5, v9
  v_and_b32 v10, 3, v2
  v_lshl_add_u32 v9, v10, 3, v9
  v_bfe_u32 v10, v2, 3, 1
  v_xor_b32 v10, s44, v10
  v_lshl_add_u32 v9, v10, 6, v9
  s_mul_i32 s51, s42, 28672
  s_add_u32 s51, s51, {WOB}
  v_add_u32 v9, s51, v9
  v_lshrrev_b32 v8, 4, v1
  v_lshrrev_b32 v10, 1, v8
  v_lshlrev_b32 v10, 2, v10
  v_lshrrev_b32 v12, 2, v2
  v_add_u32 v10, v10, v12
  s_lshl_b32 s51, s44, 5
  s_lshl_b32 s47, s42, 4
  s_add_u32 s51, s51, s47
  v_add_u32 v10, s51, v10
  v_lshlrev_b32 v10, 7, v10
  v_and_b32 v8, 1, v8
  v_lshl_add_u32 v10, v8, 5, v10
  v_and_b32 v12, 3, v2
  v_lshl_add_u32 v10, v12, 3, v10
  v_bfe_u32 v12, v2, 3, 1
  v_xor_b32 v12, s43, v12
  v_lshl_add_u32 v10, v12, 6, v10
  v_add_u32 v10, {YB}, v10
  v_bfe_u32 v2, v3, 2, 2
  s_lshl_b32 s51, s43, 11
  s_lshl_b32 s47, s42, 15
  s_add_u32 s51, s51, s47
  s_add_u32 s51, s51, {OB}
  v_lshlrev_b32 v12, 6, v3
  v_add_u32 v12, s51, v12
  """)
    OA = [20, 21]
    for kk in range(2):
        A(f"v_add_u32 v{OA[kk]}, {2*kk}, v4")
        A(f"v_xor_b32 v{OA[kk]}, v{OA[kk]}, v2")
        A(f"v_lshl_add_u32 v{OA[kk]}, v{OA[kk]}, 4, v12")
    A(f"""
  v_lshlrev_b32 v2, 4, v1
  s_lshl_b32 s51, s6, 11
  s_add_u32 s51, s51, {EXF}
  v_add_u32 v22, s51, v2
  s_xor_b32 s51, s6, 4
  s_lshl_b32 s51, s51, 11
  s_add_u32 s51, s51, {EXF}
  v_add_u32 v23, s51, v2
  """)
    for i in range(16): A(f"v_mov_b32 v{ACC+i}, 0")
    A("""
  s_waitcnt vmcnt(0)
  s_barrier
  """)
    A.stamp(14)
    FR = 176
    def reads(C):
        Lr = []
        b = FR + 32 * (C & 1)
        for kk in range(4):
            h = 2 * C + (kk >> 1); half = kk & 1
            row0 = 28 * h + 16 * half
            Lr.append(f"ds_read_b64_tr_b16 v[{b+4*kk}:{b+4*kk+1}], v9 offset:{128*row0}")
            Lr.append(f"ds_read_b64_tr_b16 v[{b+4*kk+2}:{b+4*kk+3}], v9 offset:{128*row0 + 512}")
            Lr.append(f"ds_read_b128 v[{b+16+4*kk}:{b+16+4*kk+3}], v{OA[half]} offset:{4096*h}")
        return Lr
    for x in reads(0): A(x)
    for C in range(4):
        A("s_waitcnt lgkmcnt(0)")
        rl = reads(C + 1) if C < 3 else [f"ds_read_b64_tr_b16 v[{YV+2*q}:{YV+2*q+1}], v10 offset:{1024*q}" for q in range(2)]
        b = FR + 32 * (C & 1)
        mf = [f"v_mfma_f32_32x32x16_bf16 v[{ACC}:{ACC+15}], v[{b+4*kk}:{b+4*kk+3}], v[{b+16+4*kk}:{b+16+4*kk+3}], v[{ACC}:{ACC+15}]" for kk in range(4)]
        mix(A, mf, rl)
    A(f"s_cmp_eq_u32 s42, 0\ns_cbranch_scc1 {L('noswap')}")
    for i in range(8): A(f"v_swap_b32 v{ACC+i}, v{ACC+8+i}")
    A(f"{L('noswap')}:")
    A("s_nop 7\ns_nop 7")
    A(f"""
  ds_write_b128 v22, v[{ACC+8}:{ACC+11}]
  ds_write_b128 v22, v[{ACC+12}:{ACC+15}] offset:1024
  v_sub_f32 v{GV+1}, 1.0, v{GV}
  v_cvt_pk_bf16_f32 v{GV+1}, v{GV+1}, v{GV+1}
  v_lshlrev_b32 v{GV+1}, 16, v{GV+1}
  s_waitcnt lgkmcnt(0)
  s_barrier
  ds_read_b128 v[{ACC+8}:{ACC+11}], v23
  ds_read_b128 v[{ACC+12}:{ACC+15}], v23 offset:1024
  s_waitcnt lgkmcnt(0)
  """)
    for i in range(0, 8, 2):
        A(f"v_pk_add_f32 v[{ACC+i}:{ACC+i+1}], v[{ACC+i}:{ACC+i+1}], v[{ACC+8+i}:{ACC+9+i}]")
    T = 32
    for q in range(2):
        a = ACC + 4 * q
        t = T + 16 * q
        A(f"v_cvt_pk_bf16_f32 v{t}, v{a}, v{a+1}")
        A(f"v_cvt_pk_bf16_f32 v{t+1}, v{a+2}, v{a+3}")
        for h2 in range(2):
            A(f"v_lshlrev_b32 v{a+2*h2}, 16, v{t+h2}")
            A(f"v_and_b32 v{a+2*h2+1}, 0xffff0000, v{t+h2}")
        for (src, dst) in ((XV + 2 * q, t + 2), (DV + 2 * q, t + 6), (YV + 2 * q, t + 10)):
            for h2 in range(2):
                A(f"v_lshlrev_b32 v{dst+2*h2}, 16, v{src+h2}")
                A(f"v_and_b32 v{dst+2*h2+1}, 0xffff0000, v{src+h2}")
        for h2 in range(2):
            A(f"v_pk_mul_f32 v[{t+2+2*h2}:{t+3+2*h2}], v[{t+2+2*h2}:{t+3+2*h2}], v[{t+6+2*h2}:{t+7+2*h2}]")
        for h2 in range(2):
            A(f"v_cvt_pk_bf16_f32 v{t+6+h2}, v{t+2+2*h2}, v{t+3+2*h2}")
        for h2 in range(2):
            A(f"v_lshlrev_b32 v{t+2+2*h2}, 16, v{t+6+h2}")
            A(f"v_and_b32 v{t+3+2*h2}, 0xffff0000, v{t+6+h2}")
        for h2 in range(2):
            A(f"v_pk_add_f32 v[{t+2+2*h2}:{t+3+2*h2}], v[{t+2+2*h2}:{t+3+2*h2}], v[{t+10+2*h2}:{t+11+2*h2}]")
        for h2 in range(2):
            A(f"v_cvt_pk_bf16_f32 v{t+6+h2}, v{t+2+2*h2}, v{t+3+2*h2}")
        for h2 in range(2):
            A(f"v_lshlrev_b32 v{t+2+2*h2}, 16, v{t+6+h2}")
            A(f"v_and_b32 v{t+3+2*h2}, 0xffff0000, v{t+6+h2}")
        for h2 in range(2):
            A(f"v_pk_mul_f32 v[{a+2*h2}:{a+2*h2+1}], v[{a+2*h2}:{a+2*h2+1}], v[{GV}:{GV+1}] op_sel:[0,0] op_sel_hi:[1,0]")
            A(f"v_pk_mul_f32 v[{t+2+2*h2}:{t+3+2*h2}], v[{t+2+2*h2}:{t+3+2*h2}], v[{GV}:{GV+1}] op_sel:[0,1] op_sel_hi:[1,1]")
        for h2 in range(2):
            A(f"v_cvt_pk_bf16_f32 v{t+6+h2}, v{a+2*h2}, v{a+2*h2+1}")
            A(f"v_cvt_pk_bf16_f32 v{t+8+h2}, v{t+2+2*h2}, v{t+3+2*h2}")
        for h2 in range(2):
            A(f"v_lshlrev_b32 v{a+2*h2}, 16, v{t+6+h2}")
            A(f"v_and_b32 v{a+2*h2+1}, 0xffff0000, v{t+6+h2}")
            A(f"v_lshlrev_b32 v{t+2+2*h2}, 16, v{t+8+h2}")
            A(f"v_and_b32 v{t+3+2*h2}, 0xffff0000, v{t+8+h2}")
        for h2 in range(2):
            A(f"v_pk_add_f32 v[{a+2*h2}:{a+2*h2+1}], v[{a+2*h2}:{a+2*h2+1}], v[{t+2+2*h2}:{t+3+2*h2}]")
        A(f"v_cvt_pk_bf16_f32 v{96+2*q}, v{a}, v{a+1}")
        A(f"v_cvt_pk_bf16_f32 v{97+2*q}, v{a+2}, v{a+3}")
    A("""
  v_permlane32_swap_b32 v96, v98
  v_permlane32_swap_b32 v97, v99
  v_lshl_add_u32 v13, v4, 4, v6
  s_nop 1
  buffer_store_dwordx4 v[96:99], v13, s[20:23], s49 offen
  """)
    A.stamp(15)
    A.dump_stamps(16, "s[12:15]")
    A(f"{L('exit')}:")
    A("s_endpgm")
```

```python
import sys, os
from asmlib import Asm
import roleB2, roleA3, stageF
NAME = "gated_mix__linear_kernel_hedgehog__ssm_conv_s4__prompt"
HEADER = open("cdna_kernels/" + NAME + ".s.ref").read().split("; Override launch geometry")[0]

def kd(name, vgpr, sgpr=96):
    return f""".amdhsa_kernel {name}
  .amdhsa_next_free_vgpr {vgpr}
  .amdhsa_next_free_sgpr {sgpr}
  .amdhsa_accum_offset {vgpr}
  .amdhsa_group_segment_fixed_size 0
  .amdhsa_kernarg_size 136
  .amdhsa_user_sgpr_count 2
  .amdhsa_user_sgpr_kernarg_segment_ptr 1
  .amdhsa_system_sgpr_workgroup_id_x 1
.end_amdhsa_kernel
"""

def build(parts=("A", "B")):
    out = HEADER
    out += "; @launch grid=(240,1,1) block=(512,1,1) lds=163840\n"
    out += '.amdgcn_target "amdgcn-amd-amdhsa--gfx950"\n.text\n'
    A = Asm()
    A(f""".globl {NAME}_kernel
.p2align 8
.type {NAME}_kernel,@function
{NAME}_kernel:
  s_cmp_ge_u32 s2, 240
  s_cbranch_scc1 LK1_exit
""")
    stageF.f_setup(A)
    A("""
  s_cmp_ge_u32 s2, 128
  s_cbranch_scc1 LK1_B
""")
    roleA3.role_A(A)
    A("""LK1_exit:
  s_endpgm
LK1_B:
""")
    roleB2.role_B(A)
    out += A.finalize()
    out += '.section .rodata,"a"\n.p2align 6\n' + kd(NAME + "_kernel", 256, 100)
    return out

if __name__ == "__main__":
    if os.environ.get("PROF"): Asm.PROFILE = True
    open(sys.argv[1], "w").write(build())
```
